```python
import torch

def _softmax(x, axis=-1):
    return torch.softmax(x, dim=axis)
def _gelu(x):
    return torch.nn.functional.gelu(x, approximate="tanh")
def _silu(x):
    return torch.nn.functional.silu(x)
def _sigmoid(x):
    return torch.sigmoid(x)
def _layernorm(x, axis=-1, eps=1e-5):
    m = x.mean(dim=axis, keepdim=True)
    v = x.var(dim=axis, keepdim=True, unbiased=False)
    return (x - m) / torch.sqrt(v + eps)
def _scatter_add(tgt, idx, src, axis=0):
    return tgt.clone().index_add_(axis, idx, src)
def _segment_sum(src, seg, n):
    out = torch.zeros((n,) + src.shape[1:], dtype=src.dtype)
    return out.index_add_(0, seg, src)
def _pad(x, pw):
    flat = tuple(v for pair in reversed(pw) for v in pair)
    return torch.nn.functional.pad(x, flat)

kernel_name = 'sequential_preLN__ssm_conv_h3__glu_gated_swiglu__prompt'

def setup_inputs():

    _w = (lambda a: (lambda t: t.to(torch.bfloat16) if t.is_floating_point() else t)(torch.as_tensor(a)))
    def _A_setup():
        B, S, D = 1, 2048, 448
        ks = 4
        return {
            "q": _w((lambda *s: torch.randn(*s, dtype=torch.bfloat16) * 0.05)(B, S, D)),
            "k": _w((lambda *s: torch.randn(*s, dtype=torch.bfloat16) * 0.2)(B, S, D)),
            "v": _w((lambda *s: torch.randn(*s, dtype=torch.bfloat16) * 0.2)(B, S, D)),
            "shift_k": _w((lambda *s: torch.randn(*s, dtype=torch.bfloat16) * 0.2)(D, ks) * 0.5),
            "ssm_k": _w((lambda *s: torch.randn(*s, dtype=torch.bfloat16) * 0.4)(D, S) * (1.0 / S ** 0.5)),
            "ssm_D": _w((lambda *s: torch.randn(*s, dtype=torch.bfloat16) * 0.2)(D)),
        }
    _A_in = _A_setup()

    def _B_setup():
        B, S, D, F = 1, 2048, 448, 1792
        return {
            "x": _w((lambda *s: torch.randn(*s, dtype=torch.bfloat16) * 0.05)(B, S, D)),
            "w1": _w((lambda *s: torch.randn(*s, dtype=torch.bfloat16) * 0.2)(D, F) * (2.0 / D) ** 0.5),
            "w3": _w((lambda *s: torch.randn(*s, dtype=torch.bfloat16) * 0.2)(D, F) * (2.0 / D) ** 0.5),
            "w2": _w((lambda *s: torch.randn(*s, dtype=torch.bfloat16) * 0.2)(F, D) * (2.0 / F) ** 0.5),
        }
    _B_in = _B_setup()

    return {
        "A_q": _A_in["q"],
        "A_k": _A_in["k"],
        "A_v": _A_in["v"],
        "A_shift_k": _A_in["shift_k"],
        "A_ssm_k": _A_in["ssm_k"],
        "A_ssm_D": _A_in["ssm_D"],
        "B_x": _B_in["x"],
        "B_w1": _B_in["w1"],
        "B_w3": _B_in["w3"],
        "B_w2": _B_in["w2"],
    }

def reference(A_q, A_k, A_v, A_shift_k, A_ssm_k, A_ssm_D, B_x, B_w1, B_w3, B_w2):
    def _A_ref(q, k, v, shift_k, ssm_k, ssm_D):
        B, S, D = q.shape
        ks = shift_k.shape[-1]
        k_pad = _pad(k, ((0, 0), (ks - 1, 0), (0, 0)))
        k_shift = torch.zeros_like(k)
        for t in range(ks):
            k_shift = k_shift + k_pad[:, t:t + S, :] * shift_k[:, ks - 1 - t][None, None, :]
        kv = k_shift * v
        L = 2 * S
        kv_pad = _pad(kv, ((0, 0), (0, S), (0, 0)))
        kf_pad = _pad(ssm_k, ((0, 0), (0, S)))
        kv_f = (lambda x, axes=(-2,-1): torch.fft.rfft2(x.float(), dim=axes))(kv_pad[:, None, :, :], axes=(1, 2))
        kf_f = (lambda x, axes=(-2,-1): torch.fft.rfft2(x.float(), dim=axes))(kf_pad[:, None, :], axes=(1, 2))
        kf_f = (lambda x, *d: x.permute(*d))(kf_f, 1, 2, 0)
        y_f = kv_f * kf_f[None, :, :, :]
        y = (lambda x, s, axes=(-2,-1): torch.fft.irfft2(x, s=s, dim=axes).to(torch.bfloat16))(y_f, (1, L), axes=(1, 2))[:, 0, :S, :]
        y = y + kv * ssm_D[None, None, :]
        return q * y

    def _B_ref(x, w1, w3, w2):
        gate = torch.einsum("bsd,df->bsf", x, w1)
        up = torch.einsum("bsd,df->bsf", x, w3)
        h = _silu(gate) * up
        out = torch.einsum("bsf,fd->bsd", h, w2)
        return out

    x = A_q
    h = x + _A_ref(_layernorm(x, axis=-1), A_k, A_v, A_shift_k, A_ssm_k, A_ssm_D)
    h2 = h + _B_ref(_layernorm(h, axis=-1), B_w1, B_w3, B_w2)
    return h2
```

```python
import re

REG_RE = re.compile(r"\b([vsa])(\d+)\b|\b([vsa])\[(\d+):(\d+)\]|\b(vcc|exec|m0)(_lo|_hi)?\b")
TRANS = ("v_exp_", "v_log_", "v_rcp_", "v_rsq_", "v_sqrt_", "v_sin_", "v_cos_")


def regs_of(tok):
    out = []
    for m in REG_RE.finditer(tok):
        if m.group(1):
            out.append((m.group(1), int(m.group(2))))
        elif m.group(3):
            for i in range(int(m.group(4)), int(m.group(5)) + 1):
                out.append((m.group(3), i))
        else:
            out.append((m.group(6), 0))
    return out


class Ins:
    def __init__(self, text):
        self.text = text
        t = text.split(";")[0].strip()
        self.label = None
        self.op = ""
        self.wr = set()
        self.rd = set()
        self.srcc = set()
        self.srcab = set()
        self.states = 1
        self.target = None
        if t.endswith(":"):
            self.label = t[:-1]
            self.states = 0
            return
        if not t or t.startswith("."):
            self.states = 0
            return
        parts = t.split(None, 1)
        op = self.op = parts[0]
        rest = parts[1] if len(parts) > 1 else ""
        ops = re.split(r",\s*(?![^\[]*\])", rest) if rest else []
        ops = [o.strip() for o in ops]
        self.ops = ops
        R = [regs_of(o) for o in ops]
        self.is_mfma = op.startswith("v_mfma")
        self.is_valu = op.startswith("v_") and not self.is_mfma
        self.is_salu = op.startswith("s_")
        self.is_vmem = op.startswith(("buffer_", "global_"))
        self.is_ds = op.startswith("ds_")
        self.is_dot = op.startswith("v_dot")
        self.is_trans = op.startswith(TRANS)
        self.is_dpp = "_dpp" in op or "quad_perm" in rest or "row_" in rest
        self.is_perml = op.startswith("v_permlane")
        self.is_rdlane = op.startswith(("v_readlane", "v_readfirstlane"))
        self.is_dma = self.is_vmem and (re.search(r"\blds\b", rest) is not None or "_lds_" in op)
        self.wide_store = False
        self.store_data = set()
        if op == "s_nop":
            self.states = int(ops[0], 0) + 1
            return
        if op.startswith(("s_cbranch", "s_branch")):
            self.target = ops[0]
            return
        if op in ("s_waitcnt", "s_barrier", "s_endpgm", "s_setprio", "s_sleep"):
            return
        allr = [r for x in R for r in x]
        if self.is_mfma:
            self.wr = set(R[0])
            self.srcab = set(R[1]) | set(R[2])
            self.srcc = set(R[3])
            self.rd = self.srcab | self.srcc
            self.passes = 8 if "32x32" in op else 4
        elif self.is_perml:
            self.wr = set(allr)
            self.rd = set(allr)
        elif self.is_valu:
            nd = 1
            if re.match(r"v_(add|sub|subrev|addc|subb|subbrev)_co_", op) or op.startswith("v_div_scale"):
                nd = 2
            if op.startswith("v_mad_u64") or op.startswith("v_mad_i64"):
                nd = 2
            for x in R[:nd]:
                self.wr |= set(x)
            for x in R[nd:]:
                self.rd |= set(x)
            if op.startswith(("v_dot2c", "v_fmac", "v_mac", "v_pk_fmac")) or self.is_dpp:
                self.rd |= set(R[0])
            if op.startswith("v_cndmask") and len(ops) == 3:
                self.rd.add(("vcc", 0))
            if op.startswith("v_dot"):
                if op.startswith("v_dot2c"):
                    self.srcc = set(R[0])
                    self.srcab = set(R[1]) | set(R[2])
                else:
                    self.srcc = set(R[3])
                    self.srcab = set(R[1]) | set(R[2])
        elif self.is_vmem:
            if "store" in op or "atomic" in op:
                self.rd = set(allr)
                di = 0 if op.startswith("buffer_") else 1
                self.store_data = set(R[di])
                self.wide_store = "x3" in op or "x4" in op
            elif self.is_dma:
                self.rd = set(allr) | {("m0", 0)}
            else:
                self.wr = set(R[0])
                self.rd = set(r for x in R[1:] for r in x)
                if "d16" in op:
                    self.rd |= set(R[0])
        elif self.is_ds:
            if op.startswith(("ds_read", "ds_bpermute", "ds_permute", "ds_swizzle")) or "_rtn" in op:
                self.wr = set(R[0])
                self.rd = set(r for x in R[1:] for r in x)
            else:
                self.rd = set(allr)
        elif self.is_salu:
            if op.startswith(("s_cmp", "s_bitcmp")):
                self.rd = set(allr)
            else:
                self.wr = set(R[0]) if R else set()
                self.rd = set(r for x in R[1:] for r in x)
        else:
            raise ValueError("unknown instruction class: " + text)


def vg(s):
    return {r for r in s if r[0] in "va"}


def sg(s):
    return {r for r in s if r[0] in ("s", "vcc")}


def need(p, c):
    if not p.op or not c.op or p.op == "s_nop" or p.target or not hasattr(p, "is_mfma") or not hasattr(c, "is_mfma"):
        return 0
    n = 0
    if p.is_mfma:
        big = p.passes == 8
        D = p.wr
        if c.is_mfma:
            if D & c.srcab:
                n = max(n, 12 if big else 8)
            if D & c.srcc:
                if not (c.srcc == D and c.passes == p.passes):
                    n = max(n, 10 if big else 6)
            if (D & c.wr) and not (D & c.srcc):
                n = max(n, 10 if big else 6)
        elif c.is_valu or c.is_vmem or c.is_ds:
            if D & (c.rd | c.wr):
                n = max(n, 12 if big else 8)
            if c.is_valu and (p.srcc & c.wr):
                n = max(n, 7 if big else 3)
    elif p.is_valu:
        w = vg(p.wr)
        ws = sg(p.wr)
        if p.is_dot:
            if c.op == p.op:
                if w & c.srcab:
                    n = max(n, 3)
            elif w & (c.rd | c.wr):
                n = max(n, 3)
        if c.is_mfma and (w & c.rd):
            n = max(n, 2)
        if c.is_valu:
            if (c.is_dpp or c.is_perml) and (w & c.rd):
                n = max(n, 2)
            if c.is_rdlane and (w & c.rd):
                n = max(n, 1)
            if p.is_trans and (w & c.rd):
                n = max(n, 1)
            if ws & c.rd:
                n = max(n, 4 if c.is_rdlane else 2)
        if p.is_trans and (c.is_vmem or c.is_ds) and (w & c.rd):
            n = max(n, 1)
        if c.is_vmem and (ws & c.rd):
            n = max(n, 5)
        if c.is_salu and (ws & c.rd):
            n = max(n, 1)
    elif p.is_salu:
        if ("m0", 0) in p.wr and c.is_dma:
            n = max(n, 1)
    elif p.is_vmem:
        if p.wide_store and (p.store_data & c.wr):
            n = max(n, 2 if c.is_valu or c.is_mfma else 1)
    return n


def required_pad(hist, c):
    dist = 0
    pad = 0
    for p in reversed(hist):
        if dist >= 20:
            break
        n = need(p, c)
        if n > dist:
            pad = max(pad, n - dist)
        dist += p.states
    return pad


class Kernel:
    def __init__(self, name):
        self.name = name
        self.ins = []
        self.nops = 0

    def __call__(self, text):
        for line in text.strip("\n").split("\n"):
            line = line.strip()
            if not line:
                continue
            c = Ins(line)
            if c.op:
                pad = required_pad(self.ins, c)
                if pad:
                    self.ins.append(Ins(f"s_nop {pad - 1}"))
                    self.nops += 1
            self.ins.append(c)

    def label(self, name):
        self(f"{name}:")

    def check_branches(self):
        pos = {i.label: k for k, i in enumerate(self.ins) if i.label}
        for k, b in enumerate(self.ins):
            if b.target is None:
                continue
            t = pos[b.target]
            hist = list(self.ins[max(0, k - 40): k + 1])
            for c in self.ins[t: t + 30]:
                if c.op:
                    pad = required_pad(hist, c)
                    if pad:
                        raise RuntimeError(f"{self.name}: hazard across branch to {b.target}: {c.text} needs {pad}")
                hist.append(c)
                if c.op in ("s_branch", "s_endpgm"):
                    break

    def max_regs(self):
        mv = ms = 0
        for i in self.ins:
            for r in i.rd | i.wr:
                if r[0] == "v":
                    mv = max(mv, r[1] + 1)
                if r[0] == "s":
                    ms = max(ms, r[1] + 1)
        return mv, ms

    def text(self):
        self.check_branches()
        out = [f".globl {self.name}", ".p2align 8", f".type {self.name},@function", f"{self.name}:"]
        for i in self.ins:
            out.append(i.text if i.label else "    " + i.text)
        return "\n".join(out) + "\n"

    def descriptor(self):
        mv, ms = self.max_regs()
        mv = max(8, (mv + 7) // 8 * 8)
        return f""".p2align 6
.amdhsa_kernel {self.name}
  .amdhsa_next_free_vgpr {mv}
  .amdhsa_next_free_sgpr {max(ms, 16)}
  .amdhsa_accum_offset {mv}
  .amdhsa_group_segment_fixed_size 0
  .amdhsa_kernarg_size 104
  .amdhsa_user_sgpr_count 2
  .amdhsa_user_sgpr_kernarg_segment_ptr 1
  .amdhsa_system_sgpr_workgroup_id_x 1
.end_amdhsa_kernel
"""


def vr(a, n=1):
    return f"v{a}" if n == 1 else f"v[{a}:{a + n - 1}]"


def sr(a, n=1):
    return f"s{a}" if n == 1 else f"s[{a}:{a + n - 1}]"
```

```python
from asmlib import Kernel, vr, sr
import os

S, D, F = 2048, 448, 1792
WS_KV = 0x000000
WS_X = 0x200000
WS_ST = 0x400000
WS_H = 0x500000
WS_HH = 0x800000
WS_SIZE = 0x1000000
SD_BYTES = S * D * 2
W_BYTES = D * F * 2
SRD3 = "0x00020000"
INV448 = "0x3b124925"
OPT = dict(x.split("=") for x in os.environ.get("GENOPT", "").split(",") if x)


def bf16r(k, dst, src):
    k(f"v_cvt_pk_bf16_f32 v{dst}, v{src}, v{src}")
    k(f"v_lshlrev_b32 v{dst}, 16, v{dst}")


def interleave(k, main, fill, per=None):
    n = len(main)
    fill = list(fill)
    for i, x in enumerate(main):
        k(x)
        cnt = -(-len(fill) // (n - i)) if per is None else per
        for _ in range(min(cnt, len(fill))):
            k(fill.pop(0))
    for x in fill:
        k(x)


def gen_k2():
    k = Kernel("k2_gemm1_kernel")
    W1O, W3D, SLOT = 16384, 14464, 45184
    AUX = (3 * SLOT + 1023) // 1024 * 1024
    STAT, CS = AUX, AUX + 2048
    LDS = AUX + 3072
    WSRD, HSRD, WS = 16, 20, 24
    k("s_cmp_ge_u32 s2, 256")
    k("s_cbranch_scc1 k2_end")
    k(f"""
    s_load_dwordx4 s[4:7], s[0:1], 56
    s_load_dwordx2 {sr(WS, 2)}, s[0:1], 96
    v_and_b32 v1, 63, v0
    v_lshrrev_b32 v2, 6, v0
    v_readfirstlane_b32 s30, v2
    s_mov_b32 s{WSRD + 2}, {W_BYTES}
    s_mov_b32 s{WSRD + 3}, {SRD3}
    s_mov_b32 s{HSRD + 2}, {SD_BYTES}
    s_mov_b32 s{HSRD + 3}, {SRD3}
    s_mov_b32 s{WS + 2}, {WS_SIZE}
    s_mov_b32 s{WS + 3}, {SRD3}
    s_and_b32 s31, s2, 7
    s_lshr_b32 s32, s2, 3
    """)
    if OPT.get("k2map", "A") == "A":
        k("""
        s_lshr_b32 s33, s32, 4
        s_lshl_b32 s31, s31, 1
        s_add_u32 s33, s33, s31
        s_and_b32 s34, s32, 15
        """)
    else:
        k("""
        s_lshr_b32 s33, s31, 2
        s_lshl_b32 s33, s33, 3
        s_lshr_b32 s34, s32, 2
        s_add_u32 s33, s33, s34
        s_and_b32 s34, s31, 3
        s_lshl_b32 s34, s34, 2
        s_and_b32 s35, s32, 3
        s_add_u32 s34, s34, s35
        """)
    k("""
    s_and_b32 s35, s30, 1
    s_bfe_u32 s36, s30, 0x10001
    s_lshr_b32 s37, s30, 2
    """)
    VW = 4
    VH = 8
    k(f"""
    s_mul_i32 s38, s35, 3
    s_lshl_b32 s39, s35, 2
    s_add_u32 s39, s39, 6
    s_cmp_eq_u32 s37, 0
    s_cselect_b32 s38, s38, s39
    s_lshl_b32 s39, s38, 6
    s_mul_i32 s40, s34, 224
    """)
    for e in range(4):
        k(f"""
        v_add_u32 v10, s39, v1
        v_add_u32 v10, {64 * e}, v10
        v_mul_u32_u24 v11, 4682, v10
        v_lshrrev_b32 v11, 16, v11
        v_mul_u32_u24 v12, 14, v11
        v_sub_u32 v12, v10, v12
        v_mul_u32_u24 v11, 3584, v11
        v_lshl_add_u32 v11, v12, 4, v11
        v_add_u32 v11, s40, v11
        v_subrev_u32 v{VW + e}, {1024 * e}, v11
        """)
    k(f"""
    v_lshrrev_b32 v10, 4, v1
    v_and_b32 v11, 15, v1
    v_lshlrev_b32 v12, 2, v10
    v_xor_b32 v11, v11, v12
    v_lshlrev_b32 v10, 12, v10
    v_lshl_add_u32 v10, v11, 4, v10
    s_lshl_b32 s41, s33, 8
    s_lshl_b32 s42, s30, 15
    s_add_u32 s41, s41, s42
    v_add_u32 v{VH}, s41, v10
    v_add_u32 v{VH + 1}, {16384 - 1024}, v{VH}
    """)
    k(f"""
    s_lshl_b32 s43, s38, 10
    s_mul_i32 s45, s36, {W3D}
    s_add_u32 s43, s43, s45
    s_add_u32 s43, s43, {W1O}
    s_lshl_b32 s44, s30, 11
    s_mov_b32 s46, 0
    s_mov_b32 s47, 0
    s_waitcnt lgkmcnt(0)
    s_cmp_eq_u32 s36, 0
    s_cselect_b32 s{WSRD}, s4, s6
    s_cselect_b32 s{WSRD + 1}, s5, s7
    s_add_u32 s{HSRD}, s{WS}, {WS_H}
    s_addc_u32 s{HSRD + 1}, s{WS + 1}, 0
    """)

    def dma(nw, slot_sgpr=None, slot_imm=None):
        out = []
        if slot_sgpr is not None:
            out.append(f"s_add_u32 m0, s44, s{slot_sgpr}")
        else:
            out.append(f"s_add_u32 m0, s44, {slot_imm}")
        out.append(f"buffer_load_dwordx4 v{VH}, {sr(HSRD, 4)}, s47 offen lds")
        out.append(f"buffer_load_dwordx4 v{VH + 1}, {sr(HSRD, 4)}, s47 offen offset:1024 lds")
        if slot_sgpr is not None:
            out.append(f"s_add_u32 m0, s43, s{slot_sgpr}")
        else:
            out.append(f"s_add_u32 m0, s43, {slot_imm}")
        for e in range(nw):
            out.append(f"buffer_load_dwordx4 v{VW + e}, {sr(WSRD, 4)}, s46 offen offset:{1024 * e} lds")
        out.append(f"s_add_u32 s46, s46, {64 * 3584}")
        out.append(f"s_add_u32 s47, s47, {64 * 4096}")
        return out

    AD = 16
    FR = 32
    ACC = 64
    CSA = 24
    STA = 26

    def addr_setup():
        k(f"""
        s_lshl_b32 s50, s36, 2
        s_lshl_b32 s54, s37, 1
        s_add_u32 s51, s50, 1
        s_add_u32 s50, s50, s54
        s_cmp_eq_u32 s37, 0
        s_cselect_b32 s51, s51, 3
        s_and_b32 s54, s36, s37
        s_lshl_b32 s52, s35, 1
        s_add_u32 s52, s52, s54
        s_xor_b32 s53, s52, 1
        v_lshrrev_b32 v10, 4, v1
        v_bfe_u32 v11, v1, 2, 2
        v_and_b32 v12, 3, v1
        v_lshrrev_b32 v13, 1, v10
        v_and_b32 v10, 1, v10
        v_lshl_add_u32 v13, v13, 3, v11
        """)
        k(f"""
        v_mul_u32_u24 v14, 224, v13
        v_mul_u32_u24 v15, {W3D}, v10
        v_add_u32 v14, v14, v15
        v_and_b32 v15, 1, v12
        v_lshl_add_u32 v14, v15, 4, v14
        v_lshrrev_b32 v15, 1, v12
        v_lshl_add_u32 v14, v15, 3, v14
        s_mul_i32 s54, s35, 896
        s_sub_u32 s55, 896, s54
        s_lshl_b32 s56, s50, 5
        s_add_u32 s56, s56, {W1O}
        s_lshl_b32 s57, s51, 5
        s_add_u32 s57, s57, {W1O}
        s_add_u32 s58, s56, s54
        v_add_u32 v{AD + 0}, s58, v14
        s_add_u32 s58, s56, s55
        v_add_u32 v{AD + 1}, s58, v14
        s_add_u32 s58, s57, s54
        v_add_u32 v{AD + 2}, s58, v14
        s_add_u32 s58, s57, s55
        v_add_u32 v{AD + 3}, s58, v14
        v_lshlrev_b32 v14, 8, v13
        v_lshl_add_u32 v14, v10, 5, v14
        v_lshl_add_u32 v14, v12, 3, v14
        v_xor_b32 v15, s52, v11
        v_lshl_add_u32 v14, v15, 6, v14
        s_lshl_b32 s54, s35, 10
        s_sub_u32 s55, 1024, s54
        v_add_u32 v{AD + 4}, s54, v14
        v_add_u32 v{AD + 5}, s55, v14
        v_xor_b32 v{AD + 6}, 64, v{AD + 4}
        v_xor_b32 v{AD + 7}, 64, v{AD + 5}
        """)

    def reads(ks, st):
        out = []
        for f in (2, 0, 3, 1):
            pitch = 224 if f < 2 else 256
            for h in range(2):
                out.append(f"ds_read_b64_tr_b16 {vr(FR + st * 16 + f * 4 + 2 * h, 2)}, v{AD + 2 * f + h} offset:{ks * 16 * pitch}")
        return out

    def body(isL):
        tag = "L" if isL else "H"
        nw = 4 if isL else 3
        nD = nw + 2
        for c in range(3):
            for x in dma(nw, slot_imm=c * SLOT):
                k(x)
        addr_setup()
        for r in range(ACC, ACC + (48 if isL else 64)):
            k(f"v_mov_b32 v{r}, 0")
        for r in range(CSA, STA + 4):
            k(f"v_mov_b32 v{r}, 0")
        k(f"""
        v_lshlrev_b32 v10, 2, v0
        v_add_u32 v10, {CS}, v10
        s_mov_b32 s48, 0
        s_mov_b32 s49, 0
        s_mov_b32 s59, 0x3f803f80
        s_mov_b32 s61, {SLOT}
        """)
        if not isL:
            k(f"ds_write_b32 v10, v{CSA}")
        k(f"s_waitcnt vmcnt({2 * nD}) lgkmcnt(0)")
        k("s_barrier")
        for x in reads(0, 0):
            k(x)
        k.label(f"k2_loop{tag}")
        for ks in range(4):
            st = ks & 1
            fa, fb, b0, b1 = (FR + st * 16 + 4 * f for f in range(4))
            mf = [(0, fa, b0), (1, fa, b1), (2, fb, b0)] + ([] if isL else [(3, fb, b1)])
            mf = [f"v_mfma_f32_32x32x16_bf16 {vr(ACC + 16 * a, 16)}, {vr(x, 4)}, {vr(y, 4)}, {vr(ACC + 16 * a, 16)}" for a, x, y in mf]
            dots = []
            if OPT.get("nodot") != "1":
                dots += [f"v_dot2c_f32_bf16 v{CSA}, s59, v{fa}", f"v_dot2c_f32_bf16 v{CSA + 1}, s59, v{fb}",
                         f"v_dot2c_f32_bf16 v{CSA}, s59, v{fa + 1}", f"v_dot2c_f32_bf16 v{CSA + 1}, s59, v{fb + 1}"]
                if isL:
                    for j in range(4):
                        dots += [f"v_dot2c_f32_bf16 v{STA + (j & 1)}, s59, v{b0 + j}",
                                 f"v_dot2c_f32_bf16 v{STA + 2 + (j & 1)}, v{b0 + j}, v{b0 + j}"]
            if ks < 3:
                k("s_waitcnt lgkmcnt(0)")
                fill = reads(ks + 1, st ^ 1) + dots
            else:
                k(f"s_cmp_eq_u32 s48, {2 * SLOT}")
                k(f"s_cselect_b32 s60, {-2 * SLOT}, s61")
                k(f"s_waitcnt vmcnt({nD}) lgkmcnt(0)")
                for a in range(8):
                    k(f"v_add_u32 v{AD + a}, s60, v{AD + a}")
                k("s_barrier")
                fill = reads(0, st ^ 1) + dma(nw, slot_sgpr=48) + ["s_add_u32 s48, s48, s60"] + dots
            interleave(k, mf, fill)
        k("s_add_u32 s49, s49, 1")
        k("s_cmp_lt_u32 s49, 7")
        k(f"s_cbranch_scc1 k2_loop{tag}")
        k("s_waitcnt lgkmcnt(0)")
        k(f"""
        v_and_b32 v10, 31, v1
        v_mov_b32 v12, v{CSA}
        v_mov_b32 v13, v{CSA + 1}
        v_permlane32_swap_b32 v{CSA}, v12
        v_permlane32_swap_b32 v{CSA + 1}, v13
        v_add_f32 v12, v12, v{CSA}
        v_add_f32 v13, v13, v{CSA + 1}
        s_lshl_b32 s54, s50, 7
        s_add_u32 s54, s54, {CS}
        s_lshl_b32 s55, s51, 7
        s_add_u32 s55, s55, {CS}
        v_lshl_add_u32 v14, v10, 2, s54
        v_lshl_add_u32 v15, v10, 2, s55
        s_mov_b32 exec_hi, 0
        ds_add_f32 v14, v12
        """)
        if isL:
            k("s_cmp_eq_u32 s36, 0")
            k("s_cbranch_scc0 k2_skipcs")
        k("ds_add_f32 v15, v13")
        if isL:
            k.label("k2_skipcs")
        k("s_mov_b32 exec_hi, -1")
        if isL:
            k(f"""
            v_add_f32 v{STA}, v{STA}, v{STA + 1}
            v_add_f32 v{STA + 2}, v{STA + 2}, v{STA + 3}
            v_mov_b32 v{STA + 1}, v{STA}
            v_mov_b32 v{STA + 3}, v{STA + 2}
            v_permlane32_swap_b32 v{STA}, v{STA + 1}
            v_permlane32_swap_b32 v{STA + 2}, v{STA + 3}
            v_add_f32 v{STA}, v{STA}, v{STA + 1}
            v_add_f32 v{STA + 2}, v{STA + 2}, v{STA + 3}
            v_mul_f32 v{STA}, {INV448}, v{STA}
            v_mul_f32 v{STA + 2}, {INV448}, v{STA + 2}
            v_fma_f32 v{STA + 2}, -v{STA}, v{STA}, v{STA + 2}
            v_max_f32 v{STA + 2}, 0, v{STA + 2}
            """)
            bf16r(k, STA + 2, STA + 2)
            k(f"v_add_f32 v{STA + 2}, 0x3727c5ac, v{STA + 2}")
            bf16r(k, STA + 2, STA + 2)
            k(f"v_sqrt_f32 v{STA + 2}, v{STA + 2}")
            bf16r(k, 12, STA)
            bf16r(k, STA + 2, STA + 2)
            k(f"""
            v_rcp_f32 v13, v{STA + 2}
            v_mul_f32 v14, v{STA + 2}, v{STA + 2}
            v_mul_f32 v13, 0xbfb8aa3b, v13
            s_lshl_b32 s56, s52, 9
            s_add_u32 s56, s56, {STAT}
            v_lshl_add_u32 v11, v10, 4, s56
            ds_write_b128 v11, v[12:15]
            """)
        k("s_waitcnt lgkmcnt(0)")
        k("s_barrier")
        ST0, ST1 = 16, 20
        k(f"""
        s_lshl_b32 s56, s52, 9
        s_add_u32 s56, s56, {STAT}
        v_lshl_add_u32 v11, v10, 4, s56
        v_xor_b32 v12, 512, v11
        v_lshrrev_b32 v13, 5, v1
        v_lshl_add_u32 v14, v13, 4, s54
        v_lshl_add_u32 v15, v13, 4, s55
        ds_read_b128 {vr(ST0, 4)}, v11
        ds_read_b128 {vr(ST1, 4)}, v12
        """)
        for q in range(4):
            k(f"ds_read_b128 {vr(FR + 4 * q, 4)}, v14 offset:{32 * q}")
        for q in range(4):
            k(f"ds_read_b128 {vr(FR + 16 + 4 * q, 4)}, v15 offset:{32 * q}")
        k(f"""
        s_lshl_b32 s56, s33, 1
        s_add_u32 s56, s56, s35
        s_mul_i32 s56, s56, 112
        s_mul_i32 s57, s34, 7
        s_add_u32 s56, s56, s57
        s_add_u32 s57, s56, s51
        s_add_u32 s56, s56, s50
        s_lshl_b32 s56, s56, 11
        s_lshl_b32 s57, s57, 11
        s_add_u32 s56, s56, {WS_HH}
        s_add_u32 s57, s57, {WS_HH}
        s_and_b32 s58, s52, 1
        s_lshl_b32 s58, s58, 10
        v_lshl_add_u32 v4, v1, 4, s58
        v_xor_b32 v5, 1024, v4
        s_waitcnt lgkmcnt(0)
        """)
        T = 128
        units = [(0, 0, 0), (1, 0, 1), (2, 1, 0)] + ([] if isL else [(3, 1, 1)])
        for a, tsel, usel in units:
            ac = ACC + 16 * a
            cs = FR + 16 * tsel
            stt = ST1 if usel else ST0
            for j in range(8):
                k(f"v_pk_fma_f32 {vr(ac + 2 * j, 2)}, {vr(cs + 2 * j, 2)}, {vr(stt, 2)}, {vr(ac + 2 * j, 2)} op_sel_hi:[1,0,1] neg_lo:[0,1,0] neg_hi:[0,1,0]")
            for j in range(4):
                k(f"v_pk_mul_f32 {vr(T + 2 * j, 2)}, {vr(ac + 2 * j, 2)}, {vr(stt, 2)} op_sel:[0,1] op_sel_hi:[1,1]")
            for j in range(8):
                k(f"v_exp_f32 v{T + j}, v{T + j}")
            for j in range(4):
                k(f"v_pk_mul_f32 {vr(ac + 2 * j, 2)}, {vr(ac + 2 * j, 2)}, {vr(ac + 8 + 2 * j, 2)}")
            for j in range(4):
                k(f"v_pk_fma_f32 {vr(T + 2 * j, 2)}, {vr(T + 2 * j, 2)}, {vr(stt + 2, 2)}, {vr(stt + 2, 2)} op_sel_hi:[1,0,0]")
            for j in range(8):
                k(f"v_rcp_f32 v{T + j}, v{T + j}")
            for j in range(4):
                k(f"v_pk_mul_f32 {vr(ac + 2 * j, 2)}, {vr(ac + 2 * j, 2)}, {vr(T + 2 * j, 2)}")
            for j in range(4):
                k(f"v_cvt_pk_bf16_f32 v{ac + 8 + j}, v{ac + 2 * j}, v{ac + 2 * j + 1}")
            k(f"buffer_store_dwordx4 {vr(ac + 8, 4)}, v{5 if usel else 4}, {sr(WS, 4)}, s{57 if tsel else 56} offen")
        k("s_endpgm")

    k("s_cmp_eq_u32 s37, 0")
    k("s_cbranch_scc0 k2_roleL")
    body(False)
    k.label("k2_roleL")
    body(True)
    k.label("k2_end")
    k("s_endpgm")
    return k, (256, 512, LDS)


def gen_k3():
    k = Kernel("k3_gemm2_kernel")
    R = 7
    RING = R * 2048
    RED = 4 * RING
    LDS = RED + 49152
    W2, WS, OUT = 16, 20, 24
    k("s_cmp_ge_u32 s2, 224")
    k("s_cbranch_scc1 k3_end")
    k(f"""
    s_load_dwordx2 {sr(W2, 2)}, s[0:1], 72
    s_load_dwordx2 {sr(WS, 2)}, s[0:1], 96
    s_load_dwordx2 {sr(OUT, 2)}, s[0:1], 80
    v_and_b32 v1, 63, v0
    v_lshrrev_b32 v2, 6, v0
    v_readfirstlane_b32 s30, v2
    s_mov_b32 s{W2 + 2}, {W_BYTES}
    s_mov_b32 s{W2 + 3}, {SRD3}
    s_mov_b32 s{WS + 2}, {WS_SIZE}
    s_mov_b32 s{WS + 3}, {SRD3}
    s_mov_b32 s{OUT + 2}, {SD_BYTES}
    s_mov_b32 s{OUT + 3}, {SRD3}
    s_and_b32 s31, s2, 7
    s_lshr_b32 s32, s2, 3
    s_mul_i32 s33, s32, 37
    s_lshr_b32 s33, s33, 8
    s_mul_i32 s34, s33, 7
    s_sub_u32 s34, s32, s34
    s_lshl_b32 s31, s31, 2
    s_add_u32 s33, s33, s31
    s_and_b32 s35, s30, 1
    s_lshr_b32 s36, s30, 1
    """)
    VB0, VB1, VA0, VA1, TR0, TR1 = 4, 5, 6, 7, 8, 9
    k(f"""
    s_lshl_b32 s37, s35, 10
    v_lshl_add_u32 v{VB0}, v1, 4, s37
    v_xor_b32 v{VB1}, 1024, v{VB0}
    v_lshrrev_b32 v10, 3, v1
    v_and_b32 v11, 7, v1
    v_and_b32 v12, 2, v10
    v_lshlrev_b32 v12, 1, v12
    v_xor_b32 v11, v11, v12
    v_mul_u32_u24 v10, 896, v10
    v_lshl_add_u32 v10, v11, 4, v10
    s_lshl_b32 s37, s34, 7
    v_add_u32 v{VA0}, s37, v10
    v_add_u32 v{VA1}, {8 * 896 - 1024}, v{VA0}
    s_mul_i32 s38, s33, 112
    s_mul_i32 s39, s30, 28
    s_add_u32 s38, s38, s39
    s_lshl_b32 s38, s38, 11
    s_add_u32 s38, s38, {WS_HH}
    s_mul_i32 s39, s39, {16 * 896}
    s_mul_i32 s40, s30, {RING}
    s_waitcnt lgkmcnt(0)
    """)
    BR = 32
    AFR = 16
    ACC = 96
    RES = 160

    def loads(j):
        sl = j % R
        return [
            f"s_add_u32 m0, s40, {sl * 2048}",
            f"buffer_load_dwordx4 {vr(BR + sl * 8, 4)}, v{VB0}, {sr(WS, 4)}, s38 offen",
            f"buffer_load_dwordx4 v{VA0}, {sr(W2, 4)}, s39 offen lds",
            f"buffer_load_dwordx4 {vr(BR + sl * 8 + 4, 4)}, v{VB1}, {sr(WS, 4)}, s38 offen",
            f"buffer_load_dwordx4 v{VA1}, {sr(W2, 4)}, s39 offen offset:1024 lds",
            "s_add_u32 s38, s38, 2048",
            f"s_add_u32 s39, s39, {16 * 896}",
        ]

    for j in range(R):
        for x in loads(j):
            k(x)
    k(f"""
    v_lshrrev_b32 v10, 4, v1
    v_bfe_u32 v11, v1, 2, 2
    v_and_b32 v12, 3, v1
    v_lshrrev_b32 v13, 1, v10
    v_and_b32 v10, 1, v10
    v_lshl_add_u32 v13, v13, 3, v11
    v_lshlrev_b32 v13, 7, v13
    v_lshl_add_u32 v13, v10, 4, v13
    v_lshrrev_b32 v14, 1, v12
    v_lshl_add_u32 v13, v14, 3, v13
    v_and_b32 v14, 1, v12
    v_lshl_add_u32 v13, v14, 5, v13
    v_lshrrev_b32 v14, 1, v11
    v_xor_b32 v14, s36, v14
    v_lshl_add_u32 v13, v14, 6, v13
    v_add_u32 v{TR0}, s40, v13
    v_xor_b32 v{TR1}, 64, v{TR0}
    """)
    k(f"""
    v_and_b32 v10, 31, v1
    v_lshrrev_b32 v11, 5, v1
    s_lshl_b32 s41, s33, 6
    s_lshl_b32 s42, s35, 5
    s_add_u32 s41, s41, s42
    v_add_u32 v10, s41, v10
    s_lshl_b32 s41, s34, 6
    s_lshl_b32 s42, s36, 5
    s_add_u32 s41, s41, s42
    v_lshl_add_u32 v11, v11, 4, s41
    v_lshlrev_b32 v12, 12, v11
    v_lshl_add_u32 v12, v10, 1, v12
    v_mul_u32_u24 v13, 896, v10
    v_lshl_add_u32 v13, v11, 1, v13
    s_mov_b32 s43, {WS_H}
    """)
    for r in range(16):
        k(f"v_mov_b32 v{RES + r}, 0")

    def trreads(j):
        sl, st = j % R, j & 1
        out = []
        for e in range(2):
            for h in range(2):
                out.append(f"ds_read_b64_tr_b16 {vr(AFR + st * 8 + e * 4 + 2 * h, 2)}, v{TR0 + e} offset:{sl * 2048 + 512 * h}")
        return out

    NS = 28
    k(f"s_waitcnt vmcnt({4 * (R - 1)})")
    for x in trreads(0):
        k(x)
    extra = 0
    for j in range(NS):
        sl, st = j % R, j & 1
        if j + 1 < NS:
            younger = min(NS - 1, j + R - 1) - (j + 1)
            k(f"s_waitcnt vmcnt({4 * younger + extra})")
            for x in trreads(j + 1):
                k(x)
            k("s_waitcnt lgkmcnt(4)")
        else:
            k("s_waitcnt lgkmcnt(0)")
        mf = []
        for e in range(2):
            for u in range(2):
                c = ACC + 16 * (2 * e + u)
                cin = "0" if j == 0 else vr(c, 16)
                mf.append(f"v_mfma_f32_32x32x16_bf16 {vr(c, 16)}, {vr(AFR + st * 8 + 4 * e, 4)}, {vr(BR + sl * 8 + 4 * u, 4)}, {cin}")
        for x in mf:
            k(x)
        if j + R < NS:
            for x in loads(j + R):
                k(x)
        elif j + R < NS + 4:
            q = j + R - NS
            for r in range(4 * q, 4 * q + 4):
                k(f"buffer_load_short_d16_hi v{RES + r}, v12, {sr(WS, 4)}, s43 offen")
                k("s_add_u32 s43, s43, 4096")
            extra += 4
    k(f"v_lshlrev_b32 v10, 4, v1")
    for lam in range(1, 4):
        k(f"""
        s_xor_b32 s44, s30, {lam}
        s_mul_i32 s44, s44, 12288
        s_add_u32 s44, s44, {RED + (lam - 1) * 4096}
        v_add_u32 v{3 + lam}, s44, v10
        """)
    k(f"""
    s_mul_i32 s44, s30, 12288
    s_add_u32 s44, s44, {RED}
    v_add_u32 v10, s44, v10
    """)
    for lam in range(1, 4):
        for q in range(4):
            k(f"ds_write_b128 v{3 + lam}, {vr(ACC + 16 * lam + 4 * q, 4)} offset:{1024 * q}")
    k("s_waitcnt lgkmcnt(0)")
    k("s_barrier")
    for lam in range(3):
        for q in range(4):
            k(f"ds_read_b128 {vr(BR + 16 * lam + 4 * q, 4)}, v10 offset:{4096 * lam + 1024 * q}")
    k("s_waitcnt vmcnt(0)")
    for j in range(8):
        k(f"v_pk_add_f32 {vr(ACC + 2 * j, 2)}, {vr(ACC + 2 * j, 2)}, {vr(RES + 2 * j, 2)}")
    for lam in range(3):
        k(f"s_waitcnt lgkmcnt({8 - 4 * lam})")
        for j in range(8):
            k(f"v_pk_add_f32 {vr(ACC + 2 * j, 2)}, {vr(ACC + 2 * j, 2)}, {vr(BR + 16 * lam + 2 * j, 2)}")
    for j in range(8):
        k(f"v_cvt_pk_bf16_f32 v{RES + j}, v{ACC + 2 * j}, v{ACC + 2 * j + 1}")
    k(f"buffer_store_dwordx4 {vr(RES, 4)}, v13, {sr(OUT, 4)}, 0 offen")
    k(f"buffer_store_dwordx4 {vr(RES + 4, 4)}, v13, {sr(OUT, 4)}, 0 offen offset:16")
    k.label("k3_end")
    k("s_endpgm")
    return k, (224, 256, LDS)
```

```python
import sys
import os
sys.path.insert(0, os.path.dirname(os.path.abspath(__file__)))
from asmlib import Kernel, vr, sr

NAME = "sequential_preLN__ssm_conv_h3__glu_gated_swiglu__prompt"
S, D, F = 2048, 448, 1792
WS_KV = 0x000000
WS_X = 0x200000
WS_ST = 0x400000
WS_H = 0x500000
WS_HH = 0x800000
WS_SIZE = 0x1000000
SD_BYTES = S * D * 2
W_BYTES = D * F * 2
SRD3 = "0x00020000"
INV448 = "0x3b124925"


def srd(k, base, koff, size):
    k(f"s_load_dwordx2 {sr(base, 2)}, s[0:1], {koff}")
    k(f"s_mov_b32 s{base + 2}, {size}")
    k(f"s_mov_b32 s{base + 3}, {SRD3}")


def bf16r(k, dst, src):
    k(f"v_cvt_pk_bf16_f32 v{dst}, v{src}, v{src}")
    k(f"v_lshlrev_b32 v{dst}, 16, v{dst}")


def dpp_row_sum(k, regs):
    for mode in ("quad_perm:[1,0,3,2]", "quad_perm:[2,3,0,1]", "row_half_mirror", "row_mirror"):
        for r in regs:
            k(f"v_add_f32_dpp v{r}, v{r}, v{r} {mode} row_mask:0xf bank_mask:0xf")


def gen_k0():
    k = Kernel("k0_pre_kernel")
    X, K_, V, SH, WS = 16, 20, 24, 28, 32
    k("s_cmp_ge_u32 s2, 256")
    k("s_cbranch_scc1 k0_end")
    srd(k, X, 0, SD_BYTES)
    srd(k, K_, 8, SD_BYTES)
    srd(k, V, 16, SD_BYTES)
    srd(k, SH, 24, D * 8)
    srd(k, WS, 96, WS_SIZE)
    k("""
    v_and_b32 v1, 63, v0
    v_lshrrev_b32 v2, 6, v0
    v_readfirstlane_b32 s38, v2
    s_and_b32 s39, s2, 7
    s_lshr_b32 s40, s2, 3
    s_and_b32 s37, s40, 3
    s_lshr_b32 s40, s40, 2
    s_lshl_b32 s40, s40, 3
    s_add_u32 s36, s40, s39
    s_lshl_b32 s40, s36, 5
    s_lshl_b32 s41, s38, 3
    s_add_u32 s41, s41, s40
    s_mul_i32 s41, s41, 896
    s_mul_i32 s42, s37, 224
    s_add_u32 s41, s41, s42
    s_lshl_b32 s42, s37, 3
    s_add_u32 s42, s42, s40
    s_lshl_b32 s43, s38, 1
    s_add_u32 s42, s42, s43
    s_mul_i32 s43, s42, 896
    s_mul_i32 s44, s37, 896
    s_movk_i32 s45, 4480
    v_lshl_add_u32 v3, v1, 2, s41
    v_subrev_u32 v4, 2688, v3
    v_lshl_add_u32 v5, v1, 4, s44
    v_lshl_add_u32 v6, v1, 4, s43
    """)
    for r in range(40, 48):
        k(f"v_mov_b32 v{r}, 0")
    k("v_mov_b32 v144, 0")
    k("v_mov_b32 v145, 0")
    k("v_mov_b32 v146, 0")
    k("v_mov_b32 v147, 0")
    k("s_mov_b32 exec_hi, 0x00ffffff")
    k("s_waitcnt lgkmcnt(0)")
    k(f"buffer_load_dwordx4 v[40:43], v6, {sr(X, 4)}, 0 offen")
    k(f"buffer_load_dwordx4 v[44:47], v6, {sr(X, 4)}, 0 offen offset:896")
    k(f"buffer_load_dwordx4 v[8:11], v5, {sr(SH, 4)}, 0 offen")
    for r in range(3):
        k(f"buffer_load_dword v{12 + r}, v4, {sr(K_, 4)}, 0 offen offset:{896 * r}")

    def rows(dst, s):
        for r in range(8):
            if r < 5:
                k(f"buffer_load_dword v{dst + r}, v3, {sr(s, 4)}, 0 offen offset:{896 * r}")
            else:
                k(f"buffer_load_dword v{dst + r}, v3, {sr(s, 4)}, s45 offen offset:{896 * (r - 5)}")
    rows(15, K_)
    rows(23, V)
    rows(31, X)
    k("s_mov_b32 exec_hi, -1")
    k("""
    s_mul_i32 s46, s38, 960
    v_lshl_add_u32 v7, v1, 4, s46
    v_lshrrev_b32 v128, 2, v1
    v_and_b32 v129, 3, v1
    s_lshr_b32 s47, s38, 1
    s_and_b32 s48, s38, 1
    """)
    k("""
    s_cmp_eq_u32 s47, 0
    s_cselect_b32 s49, 3, 0
    v_xor_b32 v130, s49, v129
    v_mul_u32_u24 v130, 960, v130
    s_mul_i32 s50, s38, 3840
    v_lshl_add_u32 v130, v128, 4, v130
    v_add_u32 v130, s50, v130
    """)
    k(f"""
    s_sub_u32 s51, 63, s36
    s_cmp_eq_u32 s47, 0
    s_cselect_b32 s51, s51, s36
    s_cselect_b32 s52, {WS_KV}, {WS_X}
    s_lshl_b32 s51, s51, 6
    s_add_u32 s51, s51, s52
    s_mul_i32 s52, s37, 112
    s_add_u32 s52, s52, s48
    s_lshl_b32 s52, s52, 12
    s_add_u32 s51, s51, s52
    v_lshlrev_b32 v131, 13, v128
    v_lshl_add_u32 v131, v129, 4, v131
    v_add_u32 v131, s51, v131
    s_mov_b32 s53, 0x20000
    s_mov_b32 s54, 0x40000
    s_mov_b32 s55, 0x60000
    s_mov_b32 s56, 0x05040100
    s_mov_b32 s57, 0x07060302
    """)
    k("s_waitcnt vmcnt(28)")
    FA, FB = 148, 156
    for base, raw in ((FA, 40), (FB, 44)):
        for j in range(4):
            k(f"v_lshlrev_b32 v{base + 2 * j}, 16, v{raw + j}")
            k(f"v_and_b32 v{base + 2 * j + 1}, 0xffff0000, v{raw + j}")
    for base, t in ((FA, 164), (FB, 168)):
        k(f"v_pk_add_f32 {vr(t, 2)}, {vr(base, 2)}, {vr(base + 2, 2)}")
        k(f"v_pk_add_f32 {vr(t + 2, 2)}, {vr(base + 4, 2)}, {vr(base + 6, 2)}")
    for t in (164, 168):
        k(f"v_pk_add_f32 {vr(t, 2)}, {vr(t, 2)}, {vr(t + 2, 2)}")
    for t in (164, 168):
        k(f"v_add_f32 v{t}, v{t}, v{t + 1}")
    dpp_row_sum(k, [164, 168])
    k("""
    v_permlane16_swap_b32 v164, v168
    v_add_f32 v164, v164, v168
    v_mov_b32 v165, v164
    v_permlane32_swap_b32 v164, v165
    v_add_f32 v164, v164, v165
    """)
    k(f"v_mul_f32 v164, {INV448}, v164")
    k("v_readlane_b32 s58, v164, 0")
    k("v_readlane_b32 s60, v164, 16")
    k("s_mov_b32 exec_hi, 0x00ffffff")
    for base, sm, q in ((FA, 58, 144), (FB, 60, 146)):
        for j in range(4):
            k(f"v_pk_add_f32 {vr(base + 2 * j, 2)}, {vr(base + 2 * j, 2)}, {sr(sm, 2)} op_sel_hi:[1,0] neg_lo:[0,1] neg_hi:[0,1]")
        for j in range(4):
            k(f"v_pk_fma_f32 {vr(q, 2)}, {vr(base + 2 * j, 2)}, {vr(base + 2 * j, 2)}, {vr(q, 2)}")
    k("s_waitcnt vmcnt(16)")
    W = 86
    for j in range(4):
        for c in range(2):
            src = 8 + 2 * c + (j >> 1)
            if j & 1:
                k(f"v_and_b32 v{W + 2 * j + c}, 0xffff0000, v{src}")
            else:
                k(f"v_lshlrev_b32 v{W + 2 * j + c}, 16, v{src}")
    KF, VF, AC = 48, 70, 94
    for r in range(11):
        k(f"v_lshlrev_b32 v{KF + 2 * r}, 16, v{12 + r}")
        k(f"v_and_b32 v{KF + 2 * r + 1}, 0xffff0000, v{12 + r}")
    for r in range(8):
        k(f"v_pk_mul_f32 {vr(AC + 2 * r, 2)}, {vr(KF + 2 * r, 2)}, {vr(W + 6, 2)}")
    for j in (2, 1, 0):
        for r in range(8):
            k(f"v_pk_fma_f32 {vr(AC + 2 * r, 2)}, {vr(KF + 2 * (r + 3 - j), 2)}, {vr(W + 2 * j, 2)}, {vr(AC + 2 * r, 2)}")
    k("s_waitcnt vmcnt(8)")
    for r in range(8):
        k(f"v_lshlrev_b32 v{VF + 2 * r}, 16, v{23 + r}")
        k(f"v_and_b32 v{VF + 2 * r + 1}, 0xffff0000, v{23 + r}")
    for r in range(8):
        k(f"v_pk_mul_f32 {vr(AC + 2 * r, 2)}, {vr(AC + 2 * r, 2)}, {vr(VF + 2 * r, 2)}")
    for c in range(2):
        for j in range(4):
            k(f"v_cvt_pk_bf16_f32 v{112 + 4 * c + j}, v{AC + 2 * (7 - 2 * j) + c}, v{AC + 2 * (6 - 2 * j) + c}")
    k("ds_write_b128 v7, v[112:115]")
    k("ds_write_b128 v7, v[116:119] offset:3840")
    k("s_waitcnt vmcnt(0)")
    for c in range(2):
        for j in range(4):
            k(f"v_perm_b32 v{120 + 4 * c + j}, v{31 + 2 * j + 1}, v{31 + 2 * j}, s{56 + c}")
    k("ds_write_b128 v7, v[120:123] offset:7680")
    k("ds_write_b128 v7, v[124:127] offset:11520")
    k("s_mov_b32 exec_hi, -1")
    k("v_add_f32 v144, v144, v145")
    k("v_add_f32 v146, v146, v147")
    k("s_waitcnt lgkmcnt(0)")
    k("s_barrier")
    for t in range(4):
        k(f"ds_read_b128 {vr(112 + 4 * t, 4)}, v130 offset:{256 * t}")
    dpp_row_sum(k, [144, 146])
    k("s_waitcnt lgkmcnt(0)")
    k(f"buffer_store_dwordx4 v[112:115], v131, {sr(WS, 4)}, 0 offen")
    k(f"buffer_store_dwordx4 v[116:119], v131, {sr(WS, 4)}, s53 offen")
    k(f"buffer_store_dwordx4 v[120:123], v131, {sr(WS, 4)}, s54 offen")
    k("s_mov_b32 exec_hi, 0")
    k(f"buffer_store_dwordx4 v[124:127], v131, {sr(WS, 4)}, s55 offen")
    k("s_mov_b32 exec_hi, -1")
    k("""
    v_permlane16_swap_b32 v144, v146
    v_add_f32 v144, v144, v146
    v_mov_b32 v145, v144
    v_permlane32_swap_b32 v144, v145
    v_add_f32 v144, v144, v145
    """)
    k(f"v_mul_f32 v144, {INV448}, v144")
    bf16r(k, 144, 144)
    k("v_add_f32 v144, 0x3727c5ac, v144")
    bf16r(k, 144, 144)
    k("v_sqrt_f32 v144, v144")
    k("v_cvt_pk_bf16_f32 v144, v164, v144")
    k(f"""
    v_lshrrev_b32 v145, 4, v1
    s_lshl_b32 s42, s42, 2
    s_add_u32 s42, s42, {WS_ST}
    v_lshl_add_u32 v145, v145, 2, s42
    s_mov_b32 exec_lo, 0x00010001
    s_mov_b32 exec_hi, 0
    buffer_store_dword v144, v145, {sr(WS, 4)}, 0 offen
    """)
    k.label("k0_end")
    k("s_endpgm")
    return k, (256, 256, 15360)


def gen_k1():
    k = Kernel("k1_conv_kernel")
    HP = 4160
    KVB = 17408
    EXB = 27648
    LDS = EXB + 16384
    HS, WS = 16, 20
    k("s_cmp_ge_u32 s2, 224")
    k("s_cbranch_scc1 k1_end")
    srd(k, HS, 32, SD_BYTES)
    srd(k, WS, 96, WS_SIZE)
    k("s_load_dwordx2 s[24:25], s[0:1], 40")
    k("""
    v_and_b32 v1, 63, v0
    v_lshrrev_b32 v2, 6, v0
    v_readfirstlane_b32 s30, v2
    s_mov_b32 s31, s2
    s_lshr_b32 s32, s30, 1
    s_and_b32 s33, s30, 1
    s_lshl_b32 s34, s31, 1
    s_add_u32 s34, s34, s32
    s_lshl_b32 s35, s34, 12
    v_and_b32 v3, 15, v1
    v_lshrrev_b32 v4, 4, v1
    """)
    k(f"""
    s_xor_b32 s36, s33, 1
    s_lshl_b32 s36, s36, 1
    s_add_u32 s36, s36, s35
    v_lshl_add_u32 v5, v1, 4, s36
    s_mul_i32 s37, s30, {HP}
    s_add_u32 s38, s37, 64
    v_lshlrev_b32 v6, 6, v3
    v_lshl_add_u32 v6, v4, 4, v6
    s_lshl_b32 s39, s33, 11
    s_add_u32 s40, s39, s35
    s_add_u32 s40, s40, {WS_KV}
    s_mul_i32 s41, s32, 5120
    s_add_u32 s41, s41, {KVB}
    s_add_u32 s42, s41, s39
    s_lshl_b32 s43, s31, 2
    """)
    k(f"""
    v_lshrrev_b32 v7, 1, v4
    v_and_b32 v8, 1, v4
    v_lshl_or_b32 v7, v8, 1, v7
    v_lshl_add_u32 v7, v3, 2, v7
    s_lshl_b32 s44, s33, 7
    v_add_u32 v7, s44, v7
    v_lshlrev_b32 v8, 4, v7
    v_lshlrev_b32 v9, 5, v7
    v_sub_u32 v10, {(255 - 64) * 16}, v8
    s_add_u32 s45, s35, {WS_X}
    s_add_u32 s46, s35, {WS_KV}
    s_add_u32 s47, s35, {WS_H}
    s_mov_b32 s48, {WS_ST}
    """)
    k("s_waitcnt lgkmcnt(0)")
    k("s_load_dword s26, s[24:25], s43")
    k(f"s_load_dword s27, {sr(HS, 2)}, s35")
    k("s_mov_b32 m0, s38")
    for u in range(4):
        k(f"buffer_load_dwordx4 v5, {sr(HS, 4)}, 0 offen offset:{1024 * u} lds")
    k("s_mov_b32 m0, s42")
    for u in range(2):
        k(f"buffer_load_dwordx4 v6, {sr(WS, 4)}, s40 offen offset:{1024 * u} lds")
    XR, KR, SR_ = 176, 184, 192
    k(f"buffer_load_dwordx4 {vr(SR_, 4)}, v9, {sr(WS, 4)}, s48 offen")
    k(f"buffer_load_dwordx4 {vr(SR_ + 4, 4)}, v9, {sr(WS, 4)}, s48 offen offset:16")
    k(f"buffer_load_dwordx4 {vr(SR_ + 8, 4)}, v9, {sr(WS, 4)}, s48 offen offset:2048")
    k(f"buffer_load_dwordx4 {vr(SR_ + 12, 4)}, v9, {sr(WS, 4)}, s48 offen offset:2064")
    k(f"buffer_load_dwordx4 {vr(XR, 4)}, v8, {sr(WS, 4)}, s45 offen")
    k(f"buffer_load_dwordx4 {vr(XR + 4, 4)}, v8, {sr(WS, 4)}, s45 offen offset:1024")
    k(f"buffer_load_dwordx4 {vr(KR, 4)}, v10, {sr(WS, 4)}, s46 offen offset:1024")
    k(f"buffer_load_dwordx4 {vr(KR + 4, 4)}, v10, {sr(WS, 4)}, s46 offen")
    k(f"""
    v_mov_b32 v12, 0
    v_mov_b32 v13, 0
    s_lshl_b32 s49, s33, 9
    s_add_u32 s49, s49, s41
    v_lshl_add_u32 v11, v1, 3, s49
    ds_write_b64 v11, v[12:13] offset:4096
    """)
    VA = 16
    k(f"""
    v_add_u32 v12, 1, v3
    v_lshrrev_b32 v12, 1, v12
    v_and_b32 v13, 1, v3
    v_mul_u32_u24 v13, {HP}, v13
    v_lshl_add_u32 v12, v12, 2, v13
    v_and_b32 v13, 1, v4
    v_lshl_add_u32 v12, v13, 4, v12
    v_lshrrev_b32 v13, 1, v4
    v_lshl_add_u32 v12, v13, 9, v12
    s_mul_i32 s49, s32, {2 * HP}
    s_lshl_b32 s50, s33, 8
    s_add_u32 s49, s49, s50
    v_add_u32 v{VA}, s49, v12
    v_add_u32 v{VA + 1}, 1024, v{VA}
    v_add_u32 v{VA + 2}, 2048, v{VA}
    v_add_u32 v{VA + 3}, 3072, v{VA}
    """)
    VB = 20
    k(f"""
    v_lshlrev_b32 v12, 2, v3
    v_sub_u32 v12, 60, v12
    v_and_b32 v13, 1, v4
    v_add_u32 v12, v12, v13
    v_lshrrev_b32 v13, 1, v4
    v_lshl_add_u32 v12, v13, 5, v12
    s_lshl_b32 s50, s33, 4
    v_add_u32 v12, s50, v12
    """)
    for t in range(8):
        k(f"""
        v_add_u32 v13, {2 * t}, v12
        v_and_b32 v14, 3, v13
        v_lshl_add_u32 v14, v14, 8, s41
        v_and_b32 v15, 60, v13
        v_lshl_add_u32 v14, v15, 2, v14
        v_and_b32 v15, 0x1c0, v13
        v_lshl_add_u32 v{VB + t}, v15, 4, v14
        """)
    k(f"""
    s_waitcnt lgkmcnt(0)
    s_lshl_b32 s27, s27, 16
    s_cmp_eq_u32 s33, 0
    s_cselect_b32 s27, s27, 0
    v_mov_b32 v12, s27
    v_cmp_eq_u32 vcc, 15, v3
    v_cndmask_b32 v12, 0, v12, vcc
    v_lshl_add_u32 v13, v3, 2, s37
    ds_write_b32 v13, v12
    s_lshl_b32 s28, s26, 16
    s_and_b32 s29, s26, 0xffff0000
    s_cmp_eq_u32 s32, 0
    s_cselect_b32 s26, s28, s29
    """)
    k("s_waitcnt vmcnt(8) lgkmcnt(0)")
    k("s_barrier")
    AF = 32
    BF = 80
    ACC = 112
    QN, CC = 144, 160

    def rdA(t):
        out = []
        for m in range(4):
            r = AF + (t % 3) * 16 + m * 4
            out.append(f"ds_read2_b32 {vr(r, 2)}, v{VA + m} offset0:{8 * t} offset1:{8 * t + 1}")
            out.append(f"ds_read2_b32 {vr(r + 2, 2)}, v{VA + m} offset0:{8 * t + 2} offset1:{8 * t + 3}")
        return out

    def rdB(t):
        return [f"ds_read_b128 {vr(BF + (t % 2) * 16 + dd * 4, 4)}, v{VB + t} offset:{1024 * dd}" for dd in range(4)]

    for x in rdA(0) + rdB(0) + rdA(1):
        k(x)
    fill = []
    fill.append("s_waitcnt vmcnt(0)")
    for e in range(16):
        n, i = e >> 3, e & 7
        st = SR_ + e
        xr = XR + 4 * n + (i >> 1)
        ir = 7 - i
        kr = KR + 4 * n + (ir >> 1)
        T0, T1, T2 = 208, 209, 210
        fill += [
            f"v_and_b32 v{T0}, 0xffff0000, v{st}",
            f"v_rcp_f32 v{T0}, v{T0}",
            f"v_lshlrev_b32 v{T1}, 16, v{st}",
            (f"v_and_b32 v{CC + e}, 0xffff0000, v{xr}" if i & 1 else f"v_lshlrev_b32 v{CC + e}, 16, v{xr}"),
            f"v_sub_f32 v{T1}, v{CC + e}, v{T1}",
            (f"v_and_b32 v{T2}, 0xffff0000, v{kr}" if ir & 1 else f"v_lshlrev_b32 v{T2}, 16, v{kr}"),
            f"v_mul_f32 v{QN + e}, v{T1}, v{T0}",
            f"v_mul_f32 v{T2}, s26, v{T2}",
            f"v_fmac_f32 v{CC + e}, v{QN + e}, v{T2}",
        ]
    first = set()
    for t in range(8):
        pre = []
        if t + 1 < 8:
            pre += rdB(t + 1)
        if t + 2 <= 8:
            pre += rdA(t + 2)
        k("s_waitcnt lgkmcnt(0)")
        mf = []
        for mt in range(2):
            for n in range(4):
                for m in range(n + 1):
                    a = AF + ((t + mt) % 3) * 16 + m * 4
                    b = BF + (t % 2) * 16 + (m - n + 3) * 4
                    c = ACC + (n * 2 + mt) * 4
                    cin = vr(c, 4) if c in first else "0"
                    first.add(c)
                    mf.append(f"v_mfma_f32_16x16x32_bf16 {vr(c, 4)}, {vr(a, 4)}, {vr(b, 4)}, {cin}")
        for q, x in enumerate(mf):
            k(x)
            if pre:
                k(pre.pop(0))
            elif t >= 1 and fill:
                k(fill.pop(0))
                if fill:
                    k(fill.pop(0))
    for x in fill:
        k(x)
    k(f"""
    s_lshl_b32 s49, s30, 12
    s_add_u32 s49, s49, {EXB}
    v_lshl_add_u32 v12, v1, 4, s49
    v_xor_b32 v13, 4096, v12
    s_cmp_eq_u32 s33, 0
    s_cbranch_scc0 k1_hf1
    """)
    for hf in range(2):
        if hf == 1:
            k.label("k1_hf1")
            k("s_nop 7")
        keep = ACC + 16 * hf
        send = ACC + 16 * (1 - hf)
        for q in range(4):
            k(f"ds_write_b128 v12, {vr(send + 4 * q, 4)} offset:{1024 * q}")
        k("s_waitcnt lgkmcnt(0)")
        k("s_barrier")
        for q in range(4):
            k(f"ds_read_b128 {vr(AF + 4 * q, 4)}, v13 offset:{1024 * q}")
        for q in range(4):
            k(f"s_waitcnt lgkmcnt({3 - q})")
            k(f"v_pk_add_f32 {vr(AF + 4 * q, 2)}, {vr(AF + 4 * q, 2)}, {vr(keep + 4 * q, 2)}")
            k(f"v_pk_add_f32 {vr(AF + 4 * q + 2, 2)}, {vr(AF + 4 * q + 2, 2)}, {vr(keep + 4 * q + 2, 2)}")
        if hf == 0:
            k("s_branch k1_join")
    k.label("k1_join")
    k("s_nop 1")
    for n in range(2):
        for r in range(4):
            k(f"v_permlane16_swap_b32 v{AF + 8 * n + r}, v{AF + 8 * n + 4 + r}")
    for e in range(0, 16, 2):
        k(f"v_pk_fma_f32 {vr(CC + e, 2)}, {vr(QN + e, 2)}, {vr(AF + e, 2)}, {vr(CC + e, 2)}")
    for e in range(0, 16, 2):
        k(f"v_cvt_pk_bf16_f32 v{BF + e // 2}, v{CC + e}, v{CC + e + 1}")
    k(f"buffer_store_dwordx4 {vr(BF, 4)}, v8, {sr(WS, 4)}, s47 offen")
    k(f"buffer_store_dwordx4 {vr(BF + 4, 4)}, v8, {sr(WS, 4)}, s47 offen offset:1024")
    k.label("k1_end")
    k("s_endpgm")
    return k, (224, 256, LDS)


def build(kernels):
    head = ["; generated by dev/gen.py"]
    for kk, (g, b, lds) in kernels:
        head.append(f"; @launch kernel={kk.name} grid=({g},1,1) block=({b},1,1) lds={lds}")
    head.append('.amdgcn_target "amdgcn-amd-amdhsa--gfx950"')
    head.append(".text")
    txt = "\n".join(head) + "\n"
    for kk, _ in kernels:
        txt += kk.text()
    txt += '.section .rodata,"a"\n'
    for kk, _ in kernels:
        txt += kk.descriptor()
    return txt


if __name__ == "__main__":
    import gen23
    ks = [gen_k0(), gen_k1(), gen23.gen_k2(), gen23.gen_k3()]
    out = sys.argv[1] if len(sys.argv) > 1 else f"cdna_kernels/{NAME}.s"
    open(out, "w").write(build(ks))
    for kk, _ in ks:
        print(kk.name, "instr", len(kk.ins), "nops", kk.nops, "regs", kk.max_regs())
```

```python
import re
import os
PROF = "prof=1" in os.environ.get("GENOPT", "")

REG_RE = re.compile(r"\b([vsa])(\d+)\b|\b([vsa])\[(\d+):(\d+)\]|\b(vcc|exec|m0)(_lo|_hi)?\b")
TRANS = ("v_exp_", "v_log_", "v_rcp_", "v_rsq_", "v_sqrt_", "v_sin_", "v_cos_")


def regs_of(tok):
    out = []
    for m in REG_RE.finditer(tok):
        if m.group(1):
            out.append((m.group(1), int(m.group(2))))
        elif m.group(3):
            for i in range(int(m.group(4)), int(m.group(5)) + 1):
                out.append((m.group(3), i))
        else:
            out.append((m.group(6), 0))
    return out


class Ins:
    def __init__(self, text):
        self.text = text
        t = text.split(";")[0].strip()
        self.label = None
        self.op = ""
        self.wr = set()
        self.rd = set()
        self.srcc = set()
        self.srcab = set()
        self.states = 1
        self.target = None
        if t.endswith(":"):
            self.label = t[:-1]
            self.states = 0
            return
        if not t or t.startswith("."):
            self.states = 0
            return
        parts = t.split(None, 1)
        op = self.op = parts[0]
        rest = parts[1] if len(parts) > 1 else ""
        ops = re.split(r",\s*(?![^\[]*\])", rest) if rest else []
        ops = [o.strip() for o in ops]
        self.ops = ops
        R = [regs_of(o) for o in ops]
        self.is_mfma = op.startswith("v_mfma")
        self.is_valu = op.startswith("v_") and not self.is_mfma
        self.is_salu = op.startswith("s_")
        self.is_vmem = op.startswith(("buffer_", "global_"))
        self.is_ds = op.startswith("ds_")
        self.is_dot = op.startswith("v_dot")
        self.is_trans = op.startswith(TRANS)
        self.is_dpp = "_dpp" in op or "quad_perm" in rest or "row_" in rest
        self.is_perml = op.startswith("v_permlane")
        self.is_rdlane = op.startswith(("v_readlane", "v_readfirstlane"))
        self.is_dma = self.is_vmem and (re.search(r"\blds\b", rest) is not None or "_lds_" in op)
        self.wide_store = False
        self.store_data = set()
        if op == "s_nop":
            self.states = int(ops[0], 0) + 1
            return
        if op.startswith(("s_cbranch", "s_branch")):
            self.target = ops[0]
            return
        if op in ("s_waitcnt", "s_barrier", "s_endpgm", "s_setprio", "s_sleep"):
            return
        allr = [r for x in R for r in x]
        if self.is_mfma:
            self.wr = set(R[0])
            self.srcab = set(R[1]) | set(R[2])
            self.srcc = set(R[3])
            self.rd = self.srcab | self.srcc
            self.passes = 8 if "32x32" in op else 4
        elif self.is_perml:
            self.wr = set(allr)
            self.rd = set(allr)
        elif self.is_valu:
            nd = 1
            if re.match(r"v_(add|sub|subrev|addc|subb|subbrev)_co_", op) or op.startswith("v_div_scale"):
                nd = 2
            if op.startswith("v_mad_u64") or op.startswith("v_mad_i64"):
                nd = 2
            for x in R[:nd]:
                self.wr |= set(x)
            for x in R[nd:]:
                self.rd |= set(x)
            if op.startswith(("v_dot2c", "v_fmac", "v_mac", "v_pk_fmac")) or self.is_dpp:
                self.rd |= set(R[0])
            if op.startswith("v_cndmask") and len(ops) == 3:
                self.rd.add(("vcc", 0))
            if op.startswith("v_dot"):
                if op.startswith("v_dot2c"):
                    self.srcc = set(R[0])
                    self.srcab = set(R[1]) | set(R[2])
                else:
                    self.srcc = set(R[3])
                    self.srcab = set(R[1]) | set(R[2])
        elif self.is_vmem:
            if "store" in op or "atomic" in op:
                self.rd = set(allr)
                di = 0 if op.startswith("buffer_") else 1
                self.store_data = set(R[di])
                self.wide_store = "x3" in op or "x4" in op
            elif self.is_dma:
                self.rd = set(allr) | {("m0", 0)}
            else:
                self.wr = set(R[0])
                self.rd = set(r for x in R[1:] for r in x)
                if "d16" in op:
                    self.rd |= set(R[0])
        elif self.is_ds:
            if op.startswith(("ds_read", "ds_bpermute", "ds_permute", "ds_swizzle")) or "_rtn" in op:
                self.wr = set(R[0])
                self.rd = set(r for x in R[1:] for r in x)
            else:
                self.rd = set(allr)
        elif self.is_salu:
            if op.startswith(("s_cmp", "s_bitcmp")):
                self.rd = set(allr)
            else:
                self.wr = set(R[0]) if R else set()
                self.rd = set(r for x in R[1:] for r in x)
        else:
            raise ValueError("unknown instruction class: " + text)


def vg(s):
    return {r for r in s if r[0] in "va"}


def sg(s):
    return {r for r in s if r[0] in ("s", "vcc")}


def need(p, c):
    if not p.op or not c.op or p.op == "s_nop" or p.target or not hasattr(p, "is_mfma") or not hasattr(c, "is_mfma"):
        return 0
    n = 0
    if p.is_mfma:
        big = p.passes == 8
        D = p.wr
        if c.is_mfma:
            if D & c.srcab:
                n = max(n, 12 if big else 8)
            if D & c.srcc:
                if not (c.srcc == D and c.passes == p.passes):
                    n = max(n, 10 if big else 6)
            if (D & c.wr) and not (D & c.srcc):
                n = max(n, 10 if big else 6)
        elif c.is_valu or c.is_vmem or c.is_ds:
            if D & (c.rd | c.wr):
                n = max(n, 12 if big else 8)
            if c.is_valu and (p.srcc & c.wr):
                n = max(n, 7 if big else 3)
    elif p.is_valu:
        w = vg(p.wr)
        ws = sg(p.wr)
        if p.is_dot:
            if c.op == p.op:
                if w & c.srcab:
                    n = max(n, 3)
            elif w & (c.rd | c.wr):
                n = max(n, 3)
        if c.is_mfma and (w & c.rd):
            n = max(n, 2)
        if c.is_valu:
            if (c.is_dpp or c.is_perml) and (w & c.rd):
                n = max(n, 2)
            if c.is_rdlane and (w & c.rd):
                n = max(n, 1)
            if p.is_trans and (w & c.rd):
                n = max(n, 1)
            if ws & c.rd:
                n = max(n, 4 if c.is_rdlane else 2)
        if p.is_trans and (c.is_vmem or c.is_ds) and (w & c.rd):
            n = max(n, 1)
        if c.is_vmem and (ws & c.rd):
            n = max(n, 5)
        if c.is_salu and (ws & c.rd):
            n = max(n, 1)
    elif p.is_salu:
        if ("m0", 0) in p.wr and c.is_dma:
            n = max(n, 1)
    elif p.is_vmem:
        if p.wide_store and (p.store_data & c.wr):
            n = max(n, 2 if c.is_valu or c.is_mfma else 1)
    return n


def required_pad(hist, c):
    dist = 0
    pad = 0
    for p in reversed(hist):
        if dist >= 20:
            break
        n = need(p, c)
        if n > dist:
            pad = max(pad, n - dist)
        dist += p.states
    return pad


class Kernel:
    def __init__(self, name):
        self.name = name
        self.ins = []
        self.nops = 0

    def __call__(self, text):
        for line in text.strip("\n").split("\n"):
            line = line.strip()
            if not line:
                continue
            c = Ins(line)
            if c.op:
                pad = required_pad(self.ins, c)
                if pad:
                    self.ins.append(Ins(f"s_nop {pad - 1}"))
                    self.nops += 1
            self.ins.append(c)

    def stamp(self, i, wait=False, real=False):
        if not PROF:
            return
        self(f"{'s_memrealtime' if real else 's_memtime'} s[{64 + 2 * i}:{65 + 2 * i}]")
        if wait:
            self("s_waitcnt lgkmcnt(0)")

    def dump(self, kidx, ws, wave_sgpr, n, nw):
        if not PROF:
            return
        self.stamp(13, real=True)
        self("s_mov_b64 exec, -1")
        self("s_waitcnt vmcnt(0) lgkmcnt(0)")
        self("s_getreg_b32 s63, hwreg(HW_REG_XCC_ID)")
        self("s_getreg_b32 s62, hwreg(HW_REG_HW_ID)")
        self("v_mov_b32 v1, s66")
        for i in list(range(n - 1)) + [13]:
            self(f"v_writelane_b32 v1, s{64 + 2 * i}, {i}")
        self(f"v_writelane_b32 v1, s63, 14")
        self(f"v_writelane_b32 v1, s62, 15")
        self(f"s_mul_i32 s62, s2, {nw}")
        self(f"s_add_u32 s62, s62, s{wave_sgpr}")
        self("s_lshl_b32 s62, s62, 6")
        self(f"s_add_u32 s62, s62, {0xF00000 + kidx * 0x20000}")
        self("v_and_b32 v2, 63, v0")
        self("v_lshlrev_b32 v2, 2, v2")
        self("s_mov_b64 exec, 0xffff")
        self(f"buffer_store_dword v1, v2, s[{ws}:{ws + 3}], s62 offen")

    def label(self, name):
        self(f"{name}:")

    def check_branches(self):
        pos = {i.label: k for k, i in enumerate(self.ins) if i.label}
        for k, b in enumerate(self.ins):
            if b.target is None:
                continue
            t = pos[b.target]
            hist = list(self.ins[max(0, k - 40): k + 1])
            for c in self.ins[t: t + 30]:
                if c.op:
                    pad = required_pad(hist, c)
                    if pad:
                        raise RuntimeError(f"{self.name}: hazard across branch to {b.target}: {c.text} needs {pad}")
                hist.append(c)
                if c.op in ("s_branch", "s_endpgm"):
                    break

    def max_regs(self):
        mv = ms = 0
        for i in self.ins:
            for r in i.rd | i.wr:
                if r[0] == "v":
                    mv = max(mv, r[1] + 1)
                if r[0] == "s":
                    ms = max(ms, r[1] + 1)
        return mv, ms

    def text(self):
        self.check_branches()
        out = [f".globl {self.name}", ".p2align 8", f".type {self.name},@function", f"{self.name}:"]
        for i in self.ins:
            out.append(i.text if i.label else "    " + i.text)
        return "\n".join(out) + "\n"

    def descriptor(self):
        mv, ms = self.max_regs()
        mv = max(8, (mv + 7) // 8 * 8)
        return f""".p2align 6
.amdhsa_kernel {self.name}
  .amdhsa_next_free_vgpr {mv}
  .amdhsa_next_free_sgpr {max(ms, 16)}
  .amdhsa_accum_offset {mv}
  .amdhsa_group_segment_fixed_size 0
  .amdhsa_kernarg_size 104
  .amdhsa_user_sgpr_count 2
  .amdhsa_user_sgpr_kernarg_segment_ptr 1
  .amdhsa_system_sgpr_workgroup_id_x 1
.end_amdhsa_kernel
"""


def vr(a, n=1):
    return f"v{a}" if n == 1 else f"v[{a}:{a + n - 1}]"


def sr(a, n=1):
    return f"s{a}" if n == 1 else f"s[{a}:{a + n - 1}]"
```

```python
import os
from asmlib import Kernel, vr, sr

NAME = "sequential_preLN__ssm_conv_h3__glu_gated_swiglu__prompt"
S, D, F = 2048, 448, 1792
WS_KV = 0x000000
WS_X = 0x200000
WS_ST = 0x400000
WS_H = 0x500000
WS_HH = 0x800000
WS_WA = 0x1000000
WS_WB = 0x1400000
WS_CS = 0x1600000
WS_CNT = 0x1700000
WS_ST2 = 0x1708000
WS_SIZE = 0x2000000
HT = D * 256
SD_BYTES = S * D * 2
W_BYTES = D * F * 2
SRD3 = "0x00020000"
INV448 = "0x3b124925"
OPT = dict(x.split("=") for x in os.environ.get("GENOPT", "").split(",") if x)


def opt(name, default):
    v = OPT.get(name)
    if v is None:
        return default
    return type(default)(v)


def srd(k, base, koff, size):
    k(f"s_load_dwordx2 {sr(base, 2)}, s[0:1], {koff}")
    k(f"s_mov_b32 s{base + 2}, {size}")
    k(f"s_mov_b32 s{base + 3}, {SRD3}")


def bf16r(k, dst, src):
    k(f"v_cvt_pk_bf16_f32 v{dst}, v{src}, v{src}")
    k(f"v_lshlrev_b32 v{dst}, 16, v{dst}")


class Cnt:
    def __init__(self, k, name, mx):
        self.k, self.name, self.mx = k, name, mx
        self.q = []

    def issue(self, tag=None):
        self.q.append(tag)

    def need(self, tag):
        idx = [i for i, t in enumerate(self.q) if t == tag]
        if not idx:
            return None
        n = len(self.q) - 1 - idx[-1]
        self.q = self.q[idx[-1] + 1:]
        return min(n, self.mx)

    def wait(self, tag):
        n = self.need(tag)
        if n is not None:
            self.k(f"s_waitcnt {self.name}({n})")

    def all(self):
        self.q = []
        self.k(f"s_waitcnt {self.name}(0)")
```

```python
from common import *


def gen_k23(kidx=2):
    k = Kernel("k2_mlp_kernel")
    WS, OUT = 16, 20
    LDS = 163840
    A, ACC, BF, EX = 16, 128, 192, 224
    CSR, T, STR, CM, C1, C2 = 224, 240, 248, 252, 253, 254
    L16, HV = 2, 3
    BB = 4
    DX = opt("dx", 6)
    DY = opt("dy", 10)
    PD = opt("pd", 4)
    YP = [[int(c) for c in g] for g in opt("yp", "012-3").split("-")]
    BUD = opt("bud", 5)
    R = [1, 2] + list(range(4, 29, opt("bstep", 2)))
    RP = [0] + R[:-1]
    SC = "sc1"
    SCL = opt("scl", "sc1").replace("none", "")
    SCS = opt("scs", "sc1").replace("none", "")
    LEAD = opt("lead", 4)
    STAMPS = [("setup k0 k27 e3 sig w poll f0 f14 f28 end", "setup b1 b28 p0 e3 sig w poll f14 f28 end"),
              ("k0 k1 k2 k4 k8 k12 k16 k20 k24 k27 e0", "b1 b2 b4 b8 b12 b16 b20 b24 b28 p0 p1"),
              ("k27 e0 e1 e2 e3 sig w poll f0 f14 f28", "b28 p0 p1 e3 sig w poll f0 f14 f28 end")]
    DX0 = opt("dx0", 2)
    ROT = opt("rot", 0)
    XW0 = opt("xw0", 1)

    k("s_cmp_ge_u32 s2, 256")
    k("s_cbranch_scc1 k2_end")
    k.stamp(0, real=True)
    k.stamp(1)
    k(f"""
    s_load_dwordx2 {sr(WS, 2)}, s[0:1], 96
    s_load_dwordx2 {sr(OUT, 2)}, s[0:1], 80
    v_and_b32 v1, 63, v0
    v_lshrrev_b32 v2, 6, v0
    v_readfirstlane_b32 s30, v2
    s_mov_b32 s{WS + 2}, {WS_SIZE}
    s_mov_b32 s{WS + 3}, {SRD3}
    s_mov_b32 s{OUT + 2}, {SD_BYTES}
    s_mov_b32 s{OUT + 3}, {SRD3}
    s_and_b32 s31, s2, 7
    s_lshr_b32 s32, s2, 3
    s_mul_i32 s33, s32, 37
    s_lshr_b32 s33, s33, 8
    s_mul_i32 s34, s33, 7
    s_sub_u32 s34, s32, s34
    s_lshr_b32 s44, s31, 1
    s_lshl_b32 s44, s44, 2
    s_and_b32 s35, s31, 1
    v_lshlrev_b32 v{L16}, 4, v1
    s_cmp_ge_u32 s2, 224
    s_cbranch_scc1 k2_stats
    s_lshl_b32 s49, s33, 1
    s_sub_u32 s58, 7, s49
    s_cmp_eq_u32 s58, 7
    s_cselect_b32 s58, 0, s58
    s_add_u32 s49, s49, s34
    s_sub_u32 s48, s49, 7
    s_cselect_b32 s49, s49, s48
    s_mul_i32 s59, s49, {opt("rotb", 1)}
    s_mul_i32 s49, s49, {ROT}
    s_cmp_eq_u32 {ROT}, 0
    s_cselect_b32 s58, s34, s58
    s_add_u32 s33, s33, s44
    s_mul_i32 s36, s35, 7
    s_add_u32 s36, s36, s34
    s_lshl_b32 s36, s36, 3
    s_add_u32 s36, s36, s30
    s_mul_i32 s50, s36, 28672
    s_add_u32 s50, s50, {WS_WA}
    s_add_u32 s51, s50, 28672
    s_lshl_b32 s48, s49, 12
    s_add_u32 s37, s50, s48
    s_and_b32 s39, s30, 3
    s_lshl_b32 s39, s39, 10
    s_mul_i32 s52, s33, {HT}
    s_add_u32 s52, s52, s39
    s_add_u32 s52, s52, {WS_H}
    s_add_u32 s53, s52, {HT}
    s_lshl_b32 s48, s49, 14
    s_add_u32 s38, s52, s48
    v_lshrrev_b32 v12, 4, v1
    v_and_b32 v13, 15, v1
    v_lshlrev_b32 v14, 2, v12
    v_xor_b32 v13, v13, v14
    v_lshlrev_b32 v14, 8, v12
    v_lshl_add_u32 v{HV}, v13, 4, v14
    """)

    def late_setup():
        k(f"""
        v_lshrrev_b32 v12, 4, v1
        v_bfe_u32 v13, v1, 2, 2
        v_and_b32 v14, 3, v1
        v_lshrrev_b32 v15, 1, v12
        v_and_b32 v12, 1, v12
        v_lshl_add_u32 v15, v15, 3, v13
        v_lshlrev_b32 v15, 8, v15
        v_lshl_add_u32 v15, v13, 6, v15
        v_lshl_add_u32 v15, v12, 5, v15
        v_lshl_add_u32 v{BB}, v14, 3, v15
        v_xor_b32 v{BB + 1}, 64, v{BB}
        v_xor_b32 v{BB + 2}, 128, v{BB}
        v_xor_b32 v{BB + 3}, 192, v{BB}
        """)
        for u in range(4):
            k(f"v_add_u32 v{BB + 4 + u}, 0x10000, v{BB + u}")
        k(f"""
        s_mul_i32 s40, s33, 448
        s_add_u32 s40, s40, s36
        s_lshl_b32 s40, s40, 10
        s_add_u32 s40, s40, {WS_HH}
        s_lshl_b32 s41, s33, 3
        s_add_u32 s41, s41, s30
        s_lshl_b32 s41, s41, 7
        s_add_u32 s41, s41, {WS_CNT}
        s_lshl_b32 s42, s34, 3
        s_add_u32 s42, s42, s30
        s_mul_i32 s54, s42, 28672
        s_add_u32 s54, s54, {WS_WB}
        s_add_u32 s55, s54, 28672
        s_lshl_b32 s48, s59, 12
        s_add_u32 s42, s54, s48
        s_lshl_b32 s43, s33, 2
        s_add_u32 s43, s43, s35
        s_mul_i32 s43, s43, 112
        s_add_u32 s43, s43, s30
        s_lshl_b32 s43, s43, 10
        s_add_u32 s56, s43, {WS_HH}
        s_add_u32 s57, s56, 114688
        s_lshl_b32 s48, s59, 14
        s_add_u32 s43, s56, s48
        s_lshl_b32 s45, s36, 8
        s_add_u32 s45, s45, {WS_CS}
        s_lshl_b32 s46, s33, 9
        s_add_u32 s46, s46, {WS_ST2}
        v_lshlrev_b32 v12, 2, v1
        v_and_b32 v13, 31, v1
        v_lshlrev_b32 v13, 4, v13
        """)
        for r in (0, 1, 3, 4, 5, 6, 8, 9):
            k(f"v_mov_b32 v{CSR + r}, 0")

    def role(isY):
        tag = "Y" if isY else "X"
        vm = Cnt(k, "vmcnt", 63)
        lg = Cnt(k, "lgkmcnt", 15)

        names = STAMPS[opt("det", 0)][isY].split()

        def st(name):
            if name in names:
                k.stamp(2 + names.index(name))

        def V(text, t=None):
            k(text)
            vm.issue(t)

        def loadA(ks):
            V(f"buffer_load_dwordx4 {vr(A + 4 * ks, 4)}, v{L16}, {sr(WS, 4)}, s37 offen offset:{(ks & 3) * 1024}", ("A", ks))
            if ks & 3 == 3:
                k("s_add_u32 s37, s37, 4096")
                k("s_cmp_eq_u32 s37, s51")
                k("s_cselect_b32 s37, s50, s37")

        def loadW(i):
            V(f"buffer_load_dwordx4 {vr(A + 4 * i, 4)}, v{L16}, {sr(WS, 4)}, s42 offen offset:{(i & 3) * 1024}", ("W", i))
            if i & 3 == 3:
                k("s_add_u32 s42, s42, 4096")
                k("s_cmp_eq_u32 s42, s55")
                k("s_cselect_b32 s42, s54, s42")

        def loadH(ks):
            k(f"s_add_u32 m0, s39, {ks * 4096}")
            V(f"buffer_load_dwordx4 v{HV}, {sr(WS, 4)}, s38 offen lds", ("H", ks))
            k("s_add_u32 s38, s38, 4096")
            if ks & 3 == 3:
                k("s_cmp_eq_u32 s38, s53")
                k("s_cselect_b32 s38, s52, s38")

        def load_aux():
            V(f"buffer_load_dword v{CSR + 2}, v12, {sr(WS, 4)}, s45 offen", "cs")
            load_st()

        def load_st():
            V(f"buffer_load_dwordx4 {vr(STR, 4)}, v13, {sr(WS, 4)}, s46 offen {SC}", "st")

        def check_st():
            vm.wait("st")
            saved = list(vm.q)
            k(f"s_mov_b32 s47, 0x4000")
            k.label(f"k2_st{tag}")
            k(f"""
            v_min_u32 v14, v{STR}, v{STR + 1}
            v_min3_u32 v14, v14, v{STR + 2}, v{STR + 3}
            v_cmp_eq_u32 vcc, 0, v14
            s_nop 1
            s_cbranch_vccz k2_stok{tag}
            s_sleep 2
            """)
            load_st()
            vm.all()
            k(f"""
            s_sub_u32 s47, s47, 1
            s_cbranch_scc0 k2_st{tag}
            """)
            k.label(f"k2_stok{tag}")
            vm.q = saved
            k(f"v_mov_b32 v{CSR + 7}, v{CSR + 2}")

        def corr(u, cz=False):
            a = ACC + 16 * u
            return f"v_mfma_f32_32x32x16_bf16 {vr(a, 16)}, {vr(CSR + (2, 6, 0, 4)[u], 4)}, {vr(STR, 4)}, {'0' if cz else vr(a, 16)}"

        def epi(u):
            a = ACC + 16 * u
            out = [f"v_and_b32 v{C2}, 0xffff0000, v{STR + u}",
                   f"v_rcp_f32 v{C1}, v{C2}",
                   f"v_mul_f32 v{C2}, v{C2}, v{C2}",
                   f"v_mul_f32 v{C1}, 0xbfb8aa3b, v{C1}"]
            out += [f"v_mul_f32 v{T + j}, v{a + j}, v{C1}" for j in range(8)]
            for j in range(8):
                out += [f"v_exp_f32 v{T + j}, v{T + j}", f"v_mul_f32 v{a + j}, v{a + j}, v{a + 8 + j}"]
            out += [f"v_fma_f32 v{T + j}, v{T + j}, v{C2}, v{C2}" for j in range(8)]
            out += [f"v_rcp_f32 v{T + j}, v{T + j}" for j in range(8)]
            out += [f"v_mul_f32 v{a + j}, v{a + j}, v{T + j}" for j in range(8)]
            out += [f"v_cvt_pk_bf16_f32 v{a + 8 + j}, v{a + 2 * j}, v{a + 2 * j + 1}" for j in range(4)]
            out.append(f"s_add_u32 s44, s40, {u * 114688}")
            out.append(f"buffer_store_dwordx4 {vr(a + 8, 4)}, v{L16}, {sr(WS, 4)}, s44 offen {SCS}")
            return out

        def emit(x):
            if callable(x):
                x()
            elif x.startswith("buffer_"):
                V(x, "hh")
            else:
                k(x)

        def cost(x):
            if callable(x):
                return 1
            if x.startswith("s_"):
                return 0
            return 2 if x.startswith(("v_exp", "v_rcp")) else 1

        def run_items(items, pre, post, fills, bars):
            n = len(items)
            fq = []

            def reads(i):
                ks, u, _ = items[i]
                if ks in bars:
                    bars.remove(ks)
                    k("s_barrier")
                b = BF + 4 * (i % 8)
                base = BB + u + (4 if ks >= 16 else 0)
                for hf in range(2):
                    k(f"ds_read_b64_tr_b16 {vr(b + 2 * hf, 2)}, v{base} offset:{(ks & 15) * 4096 + hf * 1024}")
                    lg.issue(("B", i))
            for i in range(PD):
                reads(i)
            for i, (ks, u, cz) in enumerate(items):
                for x in pre.get(i, []):
                    emit(x)
                vm.wait(("A", ks))
                lg.wait(("B", i))
                a = ACC + 16 * u
                k(f"v_mfma_f32_32x32x16_bf16 {vr(a, 16)}, {vr(A + 4 * ks, 4)}, {vr(BF + 4 * (i % 8), 4)}, {'0' if cz else vr(a, 16)}")
                if i + PD < n:
                    reads(i + PD)
                for x in post.get(i, []):
                    emit(x)
                fq += fills.get(i, [])
                b = BUD
                while fq and cost(fq[0]) <= b:
                    b -= cost(fq[0])
                    emit(fq.pop(0))
            return fq

        def signal():
            vm.wait("hh")
            k(f"""
            s_mov_b64 exec, 1
            v_mov_b32 v14, 1
            v_mov_b32 v15, 0
            buffer_atomic_add v14, v15, {sr(WS, 4)}, s41 offen sc1
            s_mov_b64 exec, -1
            """)
            vm.issue("at")

        def poll_issue():
            k("v_mov_b32 v15, 0")
            V(f"buffer_load_dword v14, v15, {sr(WS, 4)}, s41 offen sc1", "poll")

        def poll():
            vm.wait("poll")
            k("s_mov_b32 s47, 0x4000")
            k.label(f"k2_poll{tag}")
            k(f"""
            v_readfirstlane_b32 s48, v14
            s_cmp_ge_u32 s48, 14
            s_cbranch_scc1 k2_pok{tag}
            s_sleep {opt("psl", 2)}
            buffer_load_dword v14, v15, {sr(WS, 4)}, s41 offen sc1
            s_waitcnt vmcnt(0)
            s_sub_u32 s47, s47, 1
            s_cbranch_scc0 k2_poll{tag}
            """)
            k.label(f"k2_pok{tag}")

        def phaseB():
            RG = BF
            NR = opt("nry" if isY else "nrx", 12)
            k(f"""
            v_and_b32 v12, 31, v1
            v_lshrrev_b32 v13, 5, v1
            v_lshlrev_b32 v12, 4, v12
            v_lshl_add_u32 v12, v13, 9, v12
            """)
            if isY:
                k("s_lshl_b32 s44, s39, 4")
                sto = [0, 8192]
            else:
                k("s_lshl_b32 s44, s39, 3")
                k("s_add_u32 s44, s44, 65536")
                sto = [49152, 0]
            k("v_add_u32 v12, s44, v12")

            def ld(i):
                st, j = divmod(i, 14)
                V(f"buffer_load_dwordx4 {vr(RG + 4 * (i % NR), 4)}, v{L16}, {sr(WS, 4)}, s43 offen {SCL}", ("F", i))
                k(f"s_add_u32 s43, s43, 8192")
                if j & 1:
                    k("s_cmp_eq_u32 s43, s57")
                    k("s_cselect_b32 s43, s56, s43")
                if i == 13:
                    for r_ in (43, 56, 57):
                        k(f"s_add_u32 s{r_}, s{r_}, {2 * 114688}")

            def wr(st):
                out = []
                for e in range(2):
                    for a in range(4):
                        oc = 4 * e + a
                        out.append(f"v_xor_b32 v{13 + (oc & 1)}, {oc * 32}, v12")
                        out.append(f"ds_write_b128 v{13 + (oc & 1)}, {vr(ACC + 16 * (2 * st + e) + 4 * a, 4)} offset:{sto[st] + oc * 1024}")
                return out
            for i in range(NR):
                ld(i)
            if not isY:
                k("s_barrier")
            fq = []
            for i in range(28):
                st_, j = divmod(i, 14)
                vm.wait(("F", i))
                if i == 0:
                    st("f0")
                for e in range(2):
                    c = ACC + 16 * (2 * st_ + e)
                    k(f"v_mfma_f32_32x32x16_bf16 {vr(c, 16)}, {vr(A + 4 * (2 * j + e), 4)}, {vr(RG + 4 * (i % NR), 4)}, {'0' if j == 0 and isY else vr(c, 16)}")
                    if fq:
                        k(fq.pop(0))
                        k(fq.pop(0))
                if i + NR < 28:
                    ld(i + NR)
                if i == 14:
                    st("f14")
                    fq = wr(0)
                if isY and i == 22:
                    k("s_waitcnt lgkmcnt(0)")
                    k("s_barrier")
            st("f28")
            for x in wr(1):
                k(x)
            k("s_waitcnt lgkmcnt(0)")

        def loadW_paced(i0, i1, cap, pa):
            for i in range(i0, i1):
                if i - cap >= 0:
                    vm.wait(("W", i - cap))
                if i == max(i0, i1 - pa):
                    poll_issue()
                loadW(i)
            if pa == 0 or i0 == i1:
                poll_issue()

        k("s_waitcnt lgkmcnt(0)")
        if not isY:
            k("s_setprio 2")
            for ks in range(DX0):
                loadA(ks)
            late_setup()
            for ks in range(DX0, DX):
                loadA(ks)
            st("setup")
            items = [(ks, u, ks == 0) for ks in range(28) for u in range(4)]
            post = {}
            for ks in range(28 - DX):
                post[4 * ks + 1] = [lambda ks=ks: loadA(ks + DX)]
            post[4 * (28 - DX) + 1] = [load_aux]
            post[4 * 26 + 3] = [check_st] + [corr(u) for u in range(4)]
            for ks_ in range(28):
                post[4 * ks_ + 3] = post.get(4 * ks_ + 3, []) + [lambda ks_=ks_: st(f"k{ks_}")]
            run_items(items, {}, post, {}, set(RP))
            k("s_setprio 0")
            k(f"""
            s_lshl_b32 s44, s58, 2
            s_add_u32 s44, s44, s30
            s_lshl_b32 s44, s44, 12
            s_lshl_b32 s48, s35, 6
            v_xor_b32 v12, s48, v{BB}
            v_add_u32 v12, s44, v12
            v_xor_b32 v13, 128, v12
            """)
            for st_ in range(2):
                for hf in range(2):
                    k(f"ds_read_b64_tr_b16 {vr(4 + 4 * st_ + 2 * hf, 2)}, v{12 + st_} offset:{hf * 1024}")
            nw_ = 0
            XWN = opt("xwn", 0)
            for u in range(4):
                ep = epi(u)
                step = max(1, len(ep) * (4 - XW0) // XWN) if u >= XW0 and XWN else 10 ** 9
                for n, x in enumerate(ep):
                    emit(x)
                    if n % step == step // 2 and nw_ < XWN:
                        loadW(nw_)
                        nw_ += 1
                st(f"e{u}")
            for i in range(opt("xwp", 4)):
                loadW(nw_)
                nw_ += 1
            k(f"""
            v_and_b32 v12, 31, v1
            v_lshrrev_b32 v13, 5, v1
            v_lshlrev_b32 v13, 3, v13
            v_sub_u32 v12, v12, v13
            s_lshl_b32 s44, s30, 4
            v_subrev_u32 v12, s44, v12
            v_mov_b32 v13, 0x3f80
            v_mov_b32 v14, 0x3f800000
            """)
            for e in range(2):
                for i in range(4):
                    d = T + 4 * e + i
                    k(f"v_cmp_eq_u32 vcc, {2 * i - 32 * e}, v12")
                    k(f"v_cndmask_b32 v{d}, 0, v13, vcc")
                    k(f"v_cmp_eq_u32 vcc, {2 * i + 1 - 32 * e}, v12")
                    k(f"v_cndmask_b32 v{d}, v{d}, v14, vcc")
            signal()
            st("sig")
            k("s_waitcnt lgkmcnt(0)")
            for st_ in range(2):
                for e in range(2):
                    k(f"v_mfma_f32_32x32x16_bf16 {vr(ACC + 16 * (2 * st_ + e), 16)}, {vr(T + 4 * e, 4)}, {vr(4 + 4 * st_, 4)}, 0")
            loadW_paced(nw_, 28, opt("xcap", 8), opt("xpa", 6))
            st("w")
            poll()
            st("poll")
            phaseB()
            k(f"""
            v_and_b32 v12, 7, v1
            v_lshrrev_b32 v13, 3, v1
            s_lshl_b32 s44, s30, 3
            v_add_u32 v13, s44, v13
            v_lshlrev_b32 v14, 1, v12
            v_xor_b32 v14, v14, v13
            v_lshlrev_b32 v14, 4, v14
            v_lshl_add_u32 v14, v12, 10, v14
            v_add_u32 v15, 0x10000, v14
            s_lshl_b32 s44, s33, 7
            s_lshl_b32 s48, s35, 5
            s_add_u32 s44, s44, s48
            v_add_u32 v13, s44, v13
            v_mul_u32_u24 v13, 896, v13
            v_lshl_add_u32 v13, v12, 4, v13
            v_add_u32 v12, 114688, v14
            s_lshl_b32 s44, s34, 7
            s_add_u32 s48, s44, {64 * 896}
            """)
            RB = A
            SUMS = [RB + 96, RB + 64]
            k("s_barrier")

            def gather(st, qs, rb):
                for n, q in enumerate(qs):
                    for h in range(2):
                        off = ((q & 3) * 2 + st) * 8192 if q >= 4 else q * 8192
                        k(f"ds_read_b128 {vr(rb + 8 * n + 4 * h, 4)}, v{14 if q >= 4 else 15 if st else 12} offset:{off + h * 512}")
                        lg.issue(("P", st, q))

            def accum(st, qs, rb):
                for n, q in enumerate(qs):
                    lg.wait(("P", st, q))
                    if rb + 8 * n == SUMS[st]:
                        continue
                    for j in range(4):
                        k(f"v_pk_add_f32 {vr(SUMS[st] + 2 * j, 2)}, {vr(SUMS[st] + 2 * j, 2)}, {vr(rb + 8 * n + 2 * j, 2)}")

            def store(st):
                for j in range(4):
                    k(f"v_cvt_pk_bf16_f32 v{4 + 4 * st + j}, v{SUMS[st] + 2 * j}, v{SUMS[st] + 2 * j + 1}")
                k(f"buffer_store_dwordx4 {vr(4 + 4 * st, 4)}, v13, {sr(OUT, 4)}, s{48 if st else 44} offen")
            lg.q = []
            gather(0, range(4), RB + 96)
            accum(0, range(4), RB + 96)
            gather(0, range(4, 8), RB + 32)
            accum(0, range(4, 8), RB + 32)
            store(0)
            gather(1, range(4), RB + 64)
            accum(1, range(4), RB + 64)
            k("s_setprio 3")
            k("s_barrier")
            gather(1, range(4, 8), RB)
            accum(1, range(4, 8), RB)
            store(1)
            st("end")
            k.dump(kidx, WS, 30, 14, 8)
            k("s_endpgm")
        else:
            k("s_setprio 1")
            nh = na = 0
            for i, (rp, r) in enumerate(zip(RP, R)):
                if i == 0:
                    while nh < DX0:
                        loadH(nh)
                        nh += 1
                    late_setup()
                while nh < min(28, r + LEAD):
                    loadH(nh)
                    nh += 1
                while na < min(DY, 2 * (r + LEAD - 28)):
                    loadA(na)
                    na += 1
                if i == 0:
                    st("setup")
                vm.wait(("H", r - 1))
                k("s_barrier")
                st(f"b{r}")
            while na < DY:
                loadA(na)
                na += 1
            items, pre, post, fills = [], {}, {}, {}
            nW = opt("yw", 0)
            YCAP = opt("ycap", 6)
            for pi, tiles in enumerate(YP):
                i0 = len(items)
                nt_ = len(tiles)
                items += [(ks, u, pi == 0 and ks == 0) for ks in range(28) for u in tiles]
                if pi == 0:
                    for ks in range(28 - DY):
                        post[i0 + nt_ * ks] = [lambda ks=ks: loadA(ks + DY)]
                    post[i0 + nt_ * (28 - DY)] = [load_aux]
                    rest = [u for g in YP[1:] for u in g]
                    post[i0 + nt_ * 27 - 1] = [check_st] + [corr(u, True) for u in rest] + [corr(u) for u in tiles]
                else:
                    fills[i0 + 1] = [x for u in YP[pi - 1] for x in epi(u)]
                post[len(items) - 1] = post.get(len(items) - 1, []) + [lambda pi=pi: st(f"p{pi}")]
                if pi == len(YP) - 1:
                    for ks in range(nW):
                        ii = i0 + nt_ * 28 * (ks + 1) // nW - 1
                        post[ii] = post.get(ii, []) + [lambda ks=ks: loadW(ks)]
            left = run_items(items, pre, post, fills, set())
            for x in left:
                emit(x)
            for u in YP[-1]:
                for x in epi(u):
                    emit(x)
            st("e3")
            for i in range(opt("ywp", 4)):
                loadW(nW)
                nW += 1
            signal()
            st("sig")
            for i in range(opt("ywq", 4)):
                loadW(nW)
                nW += 1
            k("s_barrier")
            loadW_paced(nW, 28, YCAP, opt("ypa", 6))
            st("w")
            poll()
            st("poll")
            phaseB()
            k("s_barrier")
            st("end")
            k.dump(kidx, WS, 30, 14, 8)
            k("s_endpgm")

    k("s_cmp_ge_u32 s30, 4")
    k("s_cbranch_scc1 k2_roleY")
    role(False)
    k.label("k2_roleY")
    role(True)

    k.label("k2_stats")
    k(f"""
    s_add_u32 s33, s44, s34
    s_mul_i32 s38, s33, {HT}
    s_lshl_b32 s39, s35, 7
    s_add_u32 s38, s38, s39
    s_mul_i32 s39, s30, {56 * 256}
    s_add_u32 s38, s38, s39
    s_add_u32 s38, s38, {WS_H}
    s_mul_i32 s39, s30, 7168
    v_lshrrev_b32 v12, 3, v1
    v_and_b32 v13, 7, v1
    v_lshlrev_b32 v12, 8, v12
    v_lshl_add_u32 v3, v13, 4, v12
    s_mov_b32 m0, s39
    s_waitcnt lgkmcnt(0)
    """)
    for i in range(7):
        k(f"buffer_load_dwordx4 v3, {sr(WS, 4)}, s38 offen lds")
        if i < 6:
            k("s_add_u32 m0, m0, 1024")
            k("s_add_u32 s38, s38, 2048")
    k(f"""
    v_lshrrev_b32 v12, 4, v1
    v_bfe_u32 v13, v1, 2, 2
    v_and_b32 v14, 3, v1
    v_lshrrev_b32 v15, 1, v12
    v_and_b32 v12, 1, v12
    v_lshl_add_u32 v15, v15, 2, v13
    v_lshlrev_b32 v15, 7, v15
    v_lshl_add_u32 v15, v12, 5, v15
    v_lshl_add_u32 v15, v14, 3, v15
    v_add_u32 v4, s39, v15
    v_mov_b32 v8, 0
    v_mov_b32 v9, 0
    v_mov_b32 v10, 0
    v_mov_b32 v11, 0
    s_mov_b32 s45, 0x3f803f80
    s_lshl_b32 s46, s30, 10
    s_add_u32 s46, s46, 57344
    v_and_b32 v12, 31, v1
    v_lshrrev_b32 v13, 5, v1
    v_lshl_add_u32 v12, v12, 3, s46
    v_lshl_add_u32 v5, v13, 9, v12
    v_lshlrev_b32 v6, 3, v1
    s_lshl_b32 s46, s33, 9
    s_lshl_b32 s47, s35, 3
    s_add_u32 s46, s46, s47
    s_add_u32 s46, s46, {WS_ST2}
    v_and_b32 v7, 31, v1
    v_lshlrev_b32 v7, 4, v7
    v_lshl_add_u32 v7, v13, 2, v7
    """)
    k.stamp(2)
    for i in range(7):
        k(f"s_waitcnt vmcnt({6 - i})")
        for t in range(2):
            k(f"ds_read_b64_tr_b16 {vr(16 + 4 * i + 2 * t, 2)}, v4 offset:{i * 1024 + t * 64}")
    k.stamp(3)
    for i in range(7):
        k(f"s_waitcnt lgkmcnt({12 - 2 * i})")
        for j in range(2):
            for t in range(2):
                r = 16 + 4 * i + 2 * t + j
                k(f"v_dot2c_f32_bf16 v{8 + 2 * t}, s45, v{r}")
                k(f"v_dot2c_f32_bf16 v{9 + 2 * t}, v{r}, v{r}")
    k("""
    ds_write_b64 v5, v[8:9]
    ds_write_b64 v5, v[10:11] offset:256
    s_waitcnt lgkmcnt(0)
    s_barrier
    s_cmp_lg_u32 s30, 0
    s_cbranch_scc1 k2_stats_end
    """)
    for q in range(16):
        k(f"ds_read_b64 {vr(16 + 2 * q, 2)}, v6 offset:{57344 + q * 512}")
    k("s_waitcnt lgkmcnt(8)")
    for q in range(4):
        k(f"v_pk_add_f32 {vr(16 + 2 * q, 2)}, {vr(16 + 2 * q, 2)}, {vr(24 + 2 * q, 2)}")
    k("s_waitcnt lgkmcnt(0)")
    for q in range(4):
        k(f"v_pk_add_f32 {vr(32 + 2 * q, 2)}, {vr(32 + 2 * q, 2)}, {vr(40 + 2 * q, 2)}")
    for q in range(4):
        k(f"v_pk_add_f32 {vr(16 + 2 * q, 2)}, {vr(16 + 2 * q, 2)}, {vr(32 + 2 * q, 2)}")
    k("""
    v_pk_add_f32 v[16:17], v[16:17], v[20:21]
    v_pk_add_f32 v[18:19], v[18:19], v[22:23]
    v_pk_add_f32 v[16:17], v[16:17], v[18:19]
    """)
    k(f"""
    v_mul_f32 v16, {INV448}, v16
    v_mul_f32 v17, {INV448}, v17
    v_fma_f32 v17, -v16, v16, v17
    v_max_f32 v17, 0, v17
    """)
    bf16r(k, 17, 17)
    k("v_add_f32 v17, 0x3727c5ac, v17")
    bf16r(k, 17, 17)
    k("v_sqrt_f32 v17, v17")
    k("v_cvt_pk_bf16_f32 v16, v16, v17")
    k(f"buffer_store_dword v16, v7, {sr(WS, 4)}, s46 offen sc1")
    if opt("pfw", 1):
        k("s_barrier")
        k("s_branch k2_stats_fin")
        k.label("k2_stats_end")
        k(f"""
        s_sub_u32 s40, s30, 1
        s_lshl_b32 s40, s40, 3
        s_add_u32 s40, s40, s34
        s_mul_i32 s40, s40, 28672
        s_add_u32 s40, s40, {WS_WB}
        v_lshlrev_b32 v2, 7, v1
        s_mov_b32 exec_hi, 0x00ffffff
        s_barrier
        """)
        for h in range(2):
            for i in range(4):
                k(f"buffer_load_dword v{16 + 4 * h + i}, v2, {sr(WS, 4)}, s40 offen {opt('pfsc', 'sc1').replace('none', '')}")
                k(f"s_add_u32 s40, s40, {7168 if i < 3 else 4 * 28672 - 3 * 7168}")
        k.label("k2_stats_fin")
        if opt("pfh", 0):
            k.stamp(4)
            k(f"""
            s_mov_b64 exec, -1
            s_lshl_b32 s41, s33, 3
            s_add_u32 s41, s41, s30
            s_lshl_b32 s41, s41, 7
            s_add_u32 s41, s41, {WS_CNT}
            s_lshl_b32 s43, s33, 2
            s_add_u32 s43, s43, s35
            s_mul_i32 s43, s43, 112
            s_add_u32 s43, s43, s30
            s_lshl_b32 s43, s43, 10
            s_add_u32 s43, s43, {WS_HH}
            v_lshrrev_b32 v2, 3, v1
            v_and_b32 v3, 7, v1
            v_lshlrev_b32 v2, 13, v2
            v_lshl_add_u32 v2, v3, 7, v2
            v_mov_b32 v15, 0
            s_mov_b32 s47, 0x2000
            s_waitcnt vmcnt(0)
            """)
            k.stamp(5)
            k.label("k2_pfpoll")
            k(f"""
            buffer_load_dword v14, v15, {sr(WS, 4)}, s41 offen sc1
            s_waitcnt vmcnt(0)
            v_readfirstlane_b32 s48, v14
            s_cmp_ge_u32 s48, 14
            s_cbranch_scc1 k2_pfok
            s_sleep 2
            s_sub_u32 s47, s47, 1
            s_cbranch_scc0 k2_pfpoll
            """)
            k.label("k2_pfok")
            k.stamp(6)
            k("s_mov_b32 exec_hi, 0x00ffffff")
            for i in range(4):
                k(f"buffer_load_dword v{16 + i}, v2, {sr(WS, 4)}, s43 offen sc1")
                k(f"s_add_u32 s43, s43, {57344 if i != 1 else 2 * 114688 - 57344}")
    else:
        k.label("k2_stats_end")
    if not opt("pfh", 0):
        for i in range(4, 7):
            k.stamp(i)
    k("s_waitcnt vmcnt(0)")
    for i in range(7, 13):
        k.stamp(i)
    k.dump(kidx, WS, 30, 14, 8)
    k.label("k2_end")
    k("s_endpgm")
    return k, (256, 512, LDS)
```

```python
import sys
import os
sys.path.insert(0, os.path.dirname(os.path.abspath(__file__)))

from common import *


SCW = opt('scw', 'sc1')


def dpp_row_sum(k, regs):
    for mode in ("quad_perm:[1,0,3,2]", "quad_perm:[2,3,0,1]", "row_half_mirror", "row_mirror"):
        for r in regs:
            k(f"v_add_f32_dpp v{r}, v{r}, v{r} {mode} row_mask:0xf bank_mask:0xf")


def gen_k0():
    k = Kernel("k0_pre_kernel")
    X, K_, V, SH, WS = 16, 20, 24, 28, 32
    k("s_cmp_ge_u32 s2, 256")
    k("s_cbranch_scc1 k0_end")
    k.stamp(0, real=True)
    k.stamp(1)
    k("v_lshrrev_b32 v2, 6, v0")
    k("v_readfirstlane_b32 s38, v2")
    k("v_and_b32 v1, 63, v0")
    k("s_cmp_ge_u32 s38, 4")
    k("s_cbranch_scc1 k0_wa")
    srd(k, X, 0, SD_BYTES)
    srd(k, K_, 8, SD_BYTES)
    srd(k, V, 16, SD_BYTES)
    srd(k, SH, 24, D * 8)
    srd(k, WS, 96, WS_SIZE)
    k("""
    s_and_b32 s39, s2, 7
    s_lshr_b32 s40, s2, 3
    s_and_b32 s37, s40, 3
    s_lshr_b32 s40, s40, 2
    s_lshl_b32 s40, s40, 3
    s_add_u32 s36, s40, s39
    s_lshl_b32 s40, s36, 5
    s_lshl_b32 s41, s38, 3
    s_add_u32 s41, s41, s40
    s_mul_i32 s41, s41, 896
    s_mul_i32 s42, s37, 224
    s_add_u32 s41, s41, s42
    s_lshl_b32 s42, s37, 3
    s_add_u32 s42, s42, s40
    s_lshl_b32 s43, s38, 1
    s_add_u32 s42, s42, s43
    s_mul_i32 s43, s42, 896
    s_mul_i32 s44, s37, 896
    s_movk_i32 s45, 4480
    v_lshl_add_u32 v3, v1, 2, s41
    v_subrev_u32 v4, 2688, v3
    v_lshl_add_u32 v5, v1, 4, s44
    v_lshl_add_u32 v6, v1, 4, s43
    """)
    for r in range(40, 48):
        k(f"v_mov_b32 v{r}, 0")
    k("v_mov_b32 v144, 0")
    k("v_mov_b32 v145, 0")
    k("v_mov_b32 v146, 0")
    k("v_mov_b32 v147, 0")
    k("s_mov_b32 exec_hi, 0x00ffffff")
    k("s_waitcnt lgkmcnt(0)")
    k(f"buffer_load_dwordx4 v[40:43], v6, {sr(X, 4)}, 0 offen")
    k(f"buffer_load_dwordx4 v[44:47], v6, {sr(X, 4)}, 0 offen offset:896")
    k(f"buffer_load_dwordx4 v[8:11], v5, {sr(SH, 4)}, 0 offen")
    for r in range(3):
        k(f"buffer_load_dword v{12 + r}, v4, {sr(K_, 4)}, 0 offen offset:{896 * r}")

    def rows(dst, s):
        for r in range(8):
            if r < 5:
                k(f"buffer_load_dword v{dst + r}, v3, {sr(s, 4)}, 0 offen offset:{896 * r}")
            else:
                k(f"buffer_load_dword v{dst + r}, v3, {sr(s, 4)}, s45 offen offset:{896 * (r - 5)}")
    rows(15, K_)
    rows(23, V)
    rows(31, X)
    k("s_mov_b32 exec_hi, -1")
    k("""
    s_mul_i32 s46, s38, 960
    v_lshl_add_u32 v7, v1, 4, s46
    v_lshrrev_b32 v128, 2, v1
    v_and_b32 v129, 3, v1
    s_lshr_b32 s47, s38, 1
    s_and_b32 s48, s38, 1
    """)
    k("""
    s_cmp_eq_u32 s47, 0
    s_cselect_b32 s49, 3, 0
    v_xor_b32 v130, s49, v129
    v_mul_u32_u24 v130, 960, v130
    s_mul_i32 s50, s38, 3840
    v_lshl_add_u32 v130, v128, 4, v130
    v_add_u32 v130, s50, v130
    """)
    k(f"""
    s_sub_u32 s51, 63, s36
    s_cmp_eq_u32 s47, 0
    s_cselect_b32 s51, s51, s36
    s_cselect_b32 s52, {WS_KV}, {WS_X}
    s_lshl_b32 s51, s51, 6
    s_add_u32 s51, s51, s52
    s_mul_i32 s52, s37, 112
    s_add_u32 s52, s52, s48
    s_lshl_b32 s52, s52, 12
    s_add_u32 s51, s51, s52
    v_lshlrev_b32 v131, 13, v128
    v_lshl_add_u32 v131, v129, 4, v131
    v_add_u32 v131, s51, v131
    s_mov_b32 s53, 0x20000
    s_mov_b32 s54, 0x40000
    s_mov_b32 s55, 0x60000
    s_mov_b32 s56, 0x05040100
    s_mov_b32 s57, 0x07060302
    """)
    k.stamp(2)
    k("s_waitcnt vmcnt(28)")
    k.stamp(3)
    FA, FB = 148, 156
    for base, raw in ((FA, 40), (FB, 44)):
        for j in range(4):
            k(f"v_lshlrev_b32 v{base + 2 * j}, 16, v{raw + j}")
            k(f"v_and_b32 v{base + 2 * j + 1}, 0xffff0000, v{raw + j}")
    for base, t in ((FA, 164), (FB, 168)):
        k(f"v_pk_add_f32 {vr(t, 2)}, {vr(base, 2)}, {vr(base + 2, 2)}")
        k(f"v_pk_add_f32 {vr(t + 2, 2)}, {vr(base + 4, 2)}, {vr(base + 6, 2)}")
    for t in (164, 168):
        k(f"v_pk_add_f32 {vr(t, 2)}, {vr(t, 2)}, {vr(t + 2, 2)}")
    for t in (164, 168):
        k(f"v_add_f32 v{t}, v{t}, v{t + 1}")
    dpp_row_sum(k, [164, 168])
    k("""
    v_permlane16_swap_b32 v164, v168
    v_add_f32 v164, v164, v168
    v_mov_b32 v165, v164
    v_permlane32_swap_b32 v164, v165
    v_add_f32 v164, v164, v165
    """)
    k(f"v_mul_f32 v164, {INV448}, v164")
    k("v_readlane_b32 s58, v164, 0")
    k("v_readlane_b32 s60, v164, 16")
    k("s_mov_b32 exec_hi, 0x00ffffff")
    for base, sm, q in ((FA, 58, 144), (FB, 60, 146)):
        for j in range(4):
            k(f"v_pk_add_f32 {vr(base + 2 * j, 2)}, {vr(base + 2 * j, 2)}, {sr(sm, 2)} op_sel_hi:[1,0] neg_lo:[0,1] neg_hi:[0,1]")
        for j in range(4):
            k(f"v_pk_fma_f32 {vr(q, 2)}, {vr(base + 2 * j, 2)}, {vr(base + 2 * j, 2)}, {vr(q, 2)}")
    k("s_waitcnt vmcnt(16)")
    W = 86
    for j in range(4):
        for c in range(2):
            src = 8 + 2 * c + (j >> 1)
            if j & 1:
                k(f"v_and_b32 v{W + 2 * j + c}, 0xffff0000, v{src}")
            else:
                k(f"v_lshlrev_b32 v{W + 2 * j + c}, 16, v{src}")
    KF, VF, AC = 48, 70, 94
    for r in range(11):
        k(f"v_lshlrev_b32 v{KF + 2 * r}, 16, v{12 + r}")
        k(f"v_and_b32 v{KF + 2 * r + 1}, 0xffff0000, v{12 + r}")
    for r in range(8):
        k(f"v_pk_mul_f32 {vr(AC + 2 * r, 2)}, {vr(KF + 2 * r, 2)}, {vr(W + 6, 2)}")
    for j in (2, 1, 0):
        for r in range(8):
            k(f"v_pk_fma_f32 {vr(AC + 2 * r, 2)}, {vr(KF + 2 * (r + 3 - j), 2)}, {vr(W + 2 * j, 2)}, {vr(AC + 2 * r, 2)}")
    k("s_waitcnt vmcnt(8)")
    for r in range(8):
        k(f"v_lshlrev_b32 v{VF + 2 * r}, 16, v{23 + r}")
        k(f"v_and_b32 v{VF + 2 * r + 1}, 0xffff0000, v{23 + r}")
    for r in range(8):
        k(f"v_pk_mul_f32 {vr(AC + 2 * r, 2)}, {vr(AC + 2 * r, 2)}, {vr(VF + 2 * r, 2)}")
    for c in range(2):
        for j in range(4):
            k(f"v_cvt_pk_bf16_f32 v{112 + 4 * c + j}, v{AC + 2 * (7 - 2 * j) + c}, v{AC + 2 * (6 - 2 * j) + c}")
    k("ds_write_b128 v7, v[112:115]")
    k("ds_write_b128 v7, v[116:119] offset:3840")
    k.stamp(4)
    k("s_waitcnt vmcnt(0)")
    k.stamp(5)
    for c in range(2):
        for j in range(4):
            k(f"v_perm_b32 v{120 + 4 * c + j}, v{31 + 2 * j + 1}, v{31 + 2 * j}, s{56 + c}")
    k("ds_write_b128 v7, v[120:123] offset:7680")
    k("ds_write_b128 v7, v[124:127] offset:11520")
    k("s_mov_b32 exec_hi, -1")
    k("v_add_f32 v144, v144, v145")
    k("v_add_f32 v146, v146, v147")
    k("s_waitcnt lgkmcnt(0)")
    k("s_barrier")
    k.stamp(6)
    for t in range(4):
        k(f"ds_read_b128 {vr(112 + 4 * t, 4)}, v130 offset:{256 * t}")
    dpp_row_sum(k, [144, 146])
    k("s_waitcnt lgkmcnt(0)")
    k(f"buffer_store_dwordx4 v[112:115], v131, {sr(WS, 4)}, 0 offen {SCW}")
    k(f"buffer_store_dwordx4 v[116:119], v131, {sr(WS, 4)}, s53 offen {SCW}")
    k(f"buffer_store_dwordx4 v[120:123], v131, {sr(WS, 4)}, s54 offen {SCW}")
    k("s_mov_b32 exec_hi, 0")
    k(f"buffer_store_dwordx4 v[124:127], v131, {sr(WS, 4)}, s55 offen {SCW}")
    k("s_mov_b32 exec_hi, -1")
    k("""
    v_permlane16_swap_b32 v144, v146
    v_add_f32 v144, v144, v146
    v_mov_b32 v145, v144
    v_permlane32_swap_b32 v144, v145
    v_add_f32 v144, v144, v145
    """)
    k(f"v_mul_f32 v144, {INV448}, v144")
    bf16r(k, 144, 144)
    k("v_add_f32 v144, 0x3727c5ac, v144")
    bf16r(k, 144, 144)
    k("v_sqrt_f32 v144, v144")
    k("v_cvt_pk_bf16_f32 v144, v164, v144")
    k(f"""
    v_lshrrev_b32 v145, 4, v1
    s_lshl_b32 s42, s42, 2
    s_add_u32 s42, s42, {WS_ST}
    v_lshl_add_u32 v145, v145, 2, s42
    s_mov_b32 exec_lo, 0x00010001
    s_mov_b32 exec_hi, 0
    buffer_store_dword v144, v145, {sr(WS, 4)}, 0 offen
    """)
    k.stamp(7)
    k("s_waitcnt vmcnt(0)")
    k.stamp(8)
    k.dump(0, WS, 38, 10, 8)
    k("s_endpgm")
    k.label("k0_wa")
    k(f"""
    s_load_dwordx4 s[4:7], s[0:1], 56
    s_load_dwordx2 {sr(WS, 2)}, s[0:1], 96
    s_mov_b32 s{WS + 2}, {WS_SIZE}
    s_mov_b32 s{WS + 3}, {SRD3}
    s_sub_u32 s39, s38, 4
    v_lshlrev_b32 v2, 4, v1
    s_cmp_ge_u32 s2, 196
    s_cbranch_scc1 k0_zero
    s_mov_b32 s18, {W_BYTES}
    s_mov_b32 s19, {SRD3}
    s_mov_b32 s22, {W_BYTES}
    s_mov_b32 s23, {SRD3}
    s_mul_i32 s40, s2, 147
    s_lshr_b32 s40, s40, 12
    s_mul_i32 s41, s40, 28
    s_sub_u32 s41, s2, s41
    s_lshl_b32 s40, s40, 2
    s_add_u32 s40, s40, s39
    s_mul_i32 s42, s40, {16 * 3584}
    s_lshl_b32 s43, s41, 7
    s_add_u32 s42, s42, s43
    s_add_u32 s43, s42, {8 * 3584 - 1024}
    s_lshl_b32 s44, s39, 12
    s_add_u32 s44, s44, 15360
    v_lshrrev_b32 v3, 3, v1
    v_and_b32 v4, 7, v1
    v_mul_u32_u24 v3, 3584, v3
    v_lshl_add_u32 v3, v4, 4, v3
    s_mov_b32 m0, s44
    s_waitcnt lgkmcnt(0)
    s_mov_b32 s16, s4
    s_mov_b32 s17, s5
    s_mov_b32 s20, s6
    s_mov_b32 s21, s7
    buffer_load_dwordx4 v3, s[16:19], s42 offen lds
    buffer_load_dwordx4 v3, s[16:19], s43 offen offset:1024 lds
    s_add_u32 m0, s44, 2048
    buffer_load_dwordx4 v3, s[20:23], s42 offen lds
    buffer_load_dwordx4 v3, s[20:23], s43 offen offset:1024 lds
    v_lshrrev_b32 v4, 4, v1
    v_bfe_u32 v5, v1, 2, 2
    v_and_b32 v6, 3, v1
    v_lshrrev_b32 v7, 1, v4
    v_and_b32 v4, 1, v4
    v_lshl_add_u32 v7, v7, 3, v5
    v_lshl_add_u32 v7, v7, 7, s44
    v_lshl_add_u32 v7, v4, 11, v7
    v_and_b32 v5, 1, v6
    v_lshl_add_u32 v7, v5, 4, v7
    v_lshrrev_b32 v5, 1, v6
    v_lshl_add_u32 v7, v5, 3, v7
    s_mul_i32 s45, s41, 112
    s_add_u32 s45, s45, s40
    s_lshl_b32 s45, s45, 10
    s_add_u32 s45, s45, {WS_WA}
    """)
    k.stamp(2)
    k("s_barrier")
    k("s_waitcnt vmcnt(0)")
    k.stamp(3)
    for q in range(4):
        for hf in range(2):
            k(f"ds_read_b64_tr_b16 {vr(8 + 4 * q + 2 * hf, 2)}, v7 offset:{q * 32 + hf * 512}")
    for q in range(4):
        k(f"s_waitcnt lgkmcnt({6 - 2 * q})")
        k(f"buffer_store_dwordx4 {vr(8 + 4 * q, 4)}, v2, {sr(WS, 4)}, s45 offen {SCW}")
        if q < 3:
            k("s_add_u32 s45, s45, 28672")
    for i in range(4, 9):
        k.stamp(i)
    k.dump(0, WS, 38, 10, 8)
    k("s_endpgm")
    k.label("k0_zero")
    k(f"""
    s_cmp_ge_u32 s2, 206
    s_cbranch_scc1 k0_end
    s_sub_u32 s40, s2, 196
    s_lshl_b32 s40, s40, 2
    s_add_u32 s40, s40, s39
    s_lshl_b32 s40, s40, 10
    s_add_u32 s40, s40, {WS_CNT}
    v_mov_b32 v4, 0
    v_mov_b32 v5, 0
    v_mov_b32 v6, 0
    v_mov_b32 v7, 0
    s_waitcnt lgkmcnt(0)
    buffer_store_dwordx4 v[4:7], v2, {sr(WS, 4)}, s40 offen
    """)
    k.label("k0_end")
    k("s_endpgm")
    return k, (256, 512, 15360 + 16384)


def gen_k1():
    k = Kernel("k1_conv_kernel")
    HP = 4160
    KVB = 17408
    EXB = 27648
    LDS = EXB + 16384
    HS, WS = 16, 20
    k("s_cmp_ge_u32 s2, 252")
    k("s_cbranch_scc1 k1_end")
    k.stamp(0, real=True)
    k.stamp(1)
    k("v_lshrrev_b32 v2, 6, v0")
    k("v_readfirstlane_b32 s30, v2")
    k("v_and_b32 v1, 63, v0")
    k("s_cmp_ge_u32 s30, 4")
    k("s_cbranch_scc1 k1_wb")
    k("s_cmp_ge_u32 s2, 224")
    k("s_cbranch_scc1 k1_cs")
    srd(k, HS, 32, SD_BYTES)
    srd(k, WS, 96, WS_SIZE)
    k("s_load_dwordx2 s[24:25], s[0:1], 40")
    k("""
    s_mov_b32 s31, s2
    s_lshr_b32 s32, s30, 1
    s_and_b32 s33, s30, 1
    s_lshl_b32 s34, s31, 1
    s_add_u32 s34, s34, s32
    s_lshl_b32 s35, s34, 12
    v_and_b32 v3, 15, v1
    v_lshrrev_b32 v4, 4, v1
    """)
    k(f"""
    s_xor_b32 s36, s33, 1
    s_lshl_b32 s36, s36, 1
    s_add_u32 s36, s36, s35
    v_lshl_add_u32 v5, v1, 4, s36
    s_mul_i32 s37, s30, {HP}
    s_add_u32 s38, s37, 64
    v_lshlrev_b32 v6, 6, v3
    v_lshl_add_u32 v6, v4, 4, v6
    s_lshl_b32 s39, s33, 11
    s_add_u32 s40, s39, s35
    s_add_u32 s40, s40, {WS_KV}
    s_mul_i32 s41, s32, 5120
    s_add_u32 s41, s41, {KVB}
    s_add_u32 s42, s41, s39
    s_lshl_b32 s43, s31, 2
    """)
    k(f"""
    v_lshrrev_b32 v7, 1, v4
    v_and_b32 v8, 1, v4
    v_lshl_or_b32 v7, v8, 1, v7
    v_lshl_add_u32 v7, v3, 2, v7
    s_lshl_b32 s44, s33, 7
    v_add_u32 v7, s44, v7
    v_lshlrev_b32 v8, 4, v7
    v_lshlrev_b32 v9, 5, v7
    v_sub_u32 v10, {(255 - 64) * 16}, v8
    s_add_u32 s45, s35, {WS_X}
    s_add_u32 s46, s35, {WS_KV}
    s_lshl_b32 s47, s34, 8
    s_add_u32 s47, s47, {WS_H}
    s_add_u32 s51, s47, {4 * HT}
    v_lshrrev_b32 v2, 4, v7
    v_mul_u32_u24 v2, {HT}, v2
    v_and_b32 v7, 15, v7
    v_lshl_add_u32 v2, v7, 4, v2
    s_mov_b32 s48, {WS_ST}
    """)
    k("s_waitcnt lgkmcnt(0)")
    k("s_load_dword s26, s[24:25], s43")
    k(f"s_load_dword s27, {sr(HS, 2)}, s35")
    k("s_mov_b32 m0, s38")
    for u in range(4):
        k(f"buffer_load_dwordx4 v5, {sr(HS, 4)}, 0 offen offset:{1024 * u} lds")
    k("s_mov_b32 m0, s42")
    for u in range(2):
        k(f"buffer_load_dwordx4 v6, {sr(WS, 4)}, s40 offen offset:{1024 * u} lds")
    XR, KR, SR_ = 176, 184, 192
    k(f"buffer_load_dwordx4 {vr(SR_, 4)}, v9, {sr(WS, 4)}, s48 offen")
    k(f"buffer_load_dwordx4 {vr(SR_ + 4, 4)}, v9, {sr(WS, 4)}, s48 offen offset:16")
    k(f"buffer_load_dwordx4 {vr(SR_ + 8, 4)}, v9, {sr(WS, 4)}, s48 offen offset:2048")
    k(f"buffer_load_dwordx4 {vr(SR_ + 12, 4)}, v9, {sr(WS, 4)}, s48 offen offset:2064")
    k(f"buffer_load_dwordx4 {vr(XR, 4)}, v8, {sr(WS, 4)}, s45 offen")
    k(f"buffer_load_dwordx4 {vr(XR + 4, 4)}, v8, {sr(WS, 4)}, s45 offen offset:1024")
    k(f"buffer_load_dwordx4 {vr(KR, 4)}, v10, {sr(WS, 4)}, s46 offen offset:1024")
    k(f"buffer_load_dwordx4 {vr(KR + 4, 4)}, v10, {sr(WS, 4)}, s46 offen")
    k(f"""
    v_mov_b32 v12, 0
    v_mov_b32 v13, 0
    s_lshl_b32 s49, s33, 9
    s_add_u32 s49, s49, s41
    v_lshl_add_u32 v11, v1, 3, s49
    ds_write_b64 v11, v[12:13] offset:4096
    """)
    VA = 16
    k(f"""
    v_add_u32 v12, 1, v3
    v_lshrrev_b32 v12, 1, v12
    v_and_b32 v13, 1, v3
    v_mul_u32_u24 v13, {HP}, v13
    v_lshl_add_u32 v12, v12, 2, v13
    v_and_b32 v13, 1, v4
    v_lshl_add_u32 v12, v13, 4, v12
    v_lshrrev_b32 v13, 1, v4
    v_lshl_add_u32 v12, v13, 9, v12
    s_mul_i32 s49, s32, {2 * HP}
    s_lshl_b32 s50, s33, 8
    s_add_u32 s49, s49, s50
    v_add_u32 v{VA}, s49, v12
    v_add_u32 v{VA + 1}, 1024, v{VA}
    v_add_u32 v{VA + 2}, 2048, v{VA}
    v_add_u32 v{VA + 3}, 3072, v{VA}
    """)
    VB = 20
    k(f"""
    v_lshlrev_b32 v12, 2, v3
    v_sub_u32 v12, 60, v12
    v_and_b32 v13, 1, v4
    v_add_u32 v12, v12, v13
    v_lshrrev_b32 v13, 1, v4
    v_lshl_add_u32 v12, v13, 5, v12
    s_lshl_b32 s50, s33, 4
    v_add_u32 v12, s50, v12
    """)
    for t in range(8):
        k(f"""
        v_add_u32 v13, {2 * t}, v12
        v_and_b32 v14, 3, v13
        v_lshl_add_u32 v14, v14, 8, s41
        v_and_b32 v15, 60, v13
        v_lshl_add_u32 v14, v15, 2, v14
        v_and_b32 v15, 0x1c0, v13
        v_lshl_add_u32 v{VB + t}, v15, 4, v14
        """)
    k(f"""
    s_waitcnt lgkmcnt(0)
    s_lshl_b32 s27, s27, 16
    s_cmp_eq_u32 s33, 0
    s_cselect_b32 s27, s27, 0
    v_mov_b32 v12, s27
    v_cmp_eq_u32 vcc, 15, v3
    v_cndmask_b32 v12, 0, v12, vcc
    v_lshl_add_u32 v13, v3, 2, s37
    ds_write_b32 v13, v12
    s_lshl_b32 s28, s26, 16
    s_and_b32 s29, s26, 0xffff0000
    s_cmp_eq_u32 s32, 0
    s_cselect_b32 s26, s28, s29
    """)
    k.stamp(2)
    k("s_waitcnt vmcnt(8) lgkmcnt(0)")
    k.stamp(3)
    k("s_barrier")
    k.stamp(4)
    AF = 32
    BF = 80
    ACC = 112
    QN, CC = 144, 160

    def rdA(t):
        out = []
        for m in range(4):
            r = AF + (t % 3) * 16 + m * 4
            out.append(f"ds_read2_b32 {vr(r, 2)}, v{VA + m} offset0:{8 * t} offset1:{8 * t + 1}")
            out.append(f"ds_read2_b32 {vr(r + 2, 2)}, v{VA + m} offset0:{8 * t + 2} offset1:{8 * t + 3}")
        return out

    def rdB(t):
        return [f"ds_read_b128 {vr(BF + (t % 2) * 16 + dd * 4, 4)}, v{VB + t} offset:{1024 * dd}" for dd in range(4)]

    for x in rdA(0) + rdB(0) + rdA(1):
        k(x)
    fill = []
    fill.append("s_waitcnt vmcnt(0)")
    for e in range(16):
        n, i = e >> 3, e & 7
        st = SR_ + e
        xr = XR + 4 * n + (i >> 1)
        ir = 7 - i
        kr = KR + 4 * n + (ir >> 1)
        T0, T1, T2 = 208, 209, 210
        fill += [
            f"v_and_b32 v{T0}, 0xffff0000, v{st}",
            f"v_rcp_f32 v{T0}, v{T0}",
            f"v_lshlrev_b32 v{T1}, 16, v{st}",
            (f"v_and_b32 v{CC + e}, 0xffff0000, v{xr}" if i & 1 else f"v_lshlrev_b32 v{CC + e}, 16, v{xr}"),
            f"v_sub_f32 v{T1}, v{CC + e}, v{T1}",
            (f"v_and_b32 v{T2}, 0xffff0000, v{kr}" if ir & 1 else f"v_lshlrev_b32 v{T2}, 16, v{kr}"),
            f"v_mul_f32 v{QN + e}, v{T1}, v{T0}",
            f"v_mul_f32 v{T2}, s26, v{T2}",
            f"v_fmac_f32 v{CC + e}, v{QN + e}, v{T2}",
        ]
    first = set()
    for t in range(8):
        pre = []
        if t + 1 < 8:
            pre += rdB(t + 1)
        if t + 2 <= 8:
            pre += rdA(t + 2)
        k("s_waitcnt lgkmcnt(0)")
        mf = []
        for mt in range(2):
            for n in range(4):
                for m in range(n + 1):
                    a = AF + ((t + mt) % 3) * 16 + m * 4
                    b = BF + (t % 2) * 16 + (m - n + 3) * 4
                    c = ACC + (n * 2 + mt) * 4
                    cin = vr(c, 4) if c in first else "0"
                    first.add(c)
                    mf.append(f"v_mfma_f32_16x16x32_bf16 {vr(c, 4)}, {vr(a, 4)}, {vr(b, 4)}, {cin}")
        for q, x in enumerate(mf):
            k(x)
            if pre:
                k(pre.pop(0))
            elif t >= 1 and fill:
                k(fill.pop(0))
                if fill:
                    k(fill.pop(0))
    for x in fill:
        k(x)
    k.stamp(5)
    k(f"""
    s_lshl_b32 s49, s30, 12
    s_add_u32 s49, s49, {EXB}
    v_lshl_add_u32 v12, v1, 4, s49
    v_xor_b32 v13, 4096, v12
    s_cmp_eq_u32 s33, 0
    s_cbranch_scc0 k1_hf1
    """)
    for hf in range(2):
        if hf == 1:
            k.label("k1_hf1")
            k("s_nop 7")
        keep = ACC + 16 * hf
        send = ACC + 16 * (1 - hf)
        for q in range(4):
            k(f"ds_write_b128 v12, {vr(send + 4 * q, 4)} offset:{1024 * q}")
        k("s_waitcnt lgkmcnt(0)")
        k("s_barrier")
        for q in range(4):
            k(f"ds_read_b128 {vr(AF + 4 * q, 4)}, v13 offset:{1024 * q}")
        for q in range(4):
            k(f"s_waitcnt lgkmcnt({3 - q})")
            k(f"v_pk_add_f32 {vr(AF + 4 * q, 2)}, {vr(AF + 4 * q, 2)}, {vr(keep + 4 * q, 2)}")
            k(f"v_pk_add_f32 {vr(AF + 4 * q + 2, 2)}, {vr(AF + 4 * q + 2, 2)}, {vr(keep + 4 * q + 2, 2)}")
        if hf == 0:
            k("s_branch k1_join")
    k.label("k1_join")
    k.stamp(6)
    k("s_nop 1")
    for n in range(2):
        for r in range(4):
            k(f"v_permlane16_swap_b32 v{AF + 8 * n + r}, v{AF + 8 * n + 4 + r}")
    for e in range(0, 16, 2):
        k(f"v_pk_fma_f32 {vr(CC + e, 2)}, {vr(QN + e, 2)}, {vr(AF + e, 2)}, {vr(CC + e, 2)}")
    for e in range(0, 16, 2):
        k(f"v_cvt_pk_bf16_f32 v{BF + e // 2}, v{CC + e}, v{CC + e + 1}")
    k(f"buffer_store_dwordx4 {vr(BF, 4)}, v2, {sr(WS, 4)}, s47 offen {SCW}")
    k(f"buffer_store_dwordx4 {vr(BF + 4, 4)}, v2, {sr(WS, 4)}, s51 offen {SCW}")
    k.stamp(7)
    k("s_waitcnt vmcnt(0)")
    k.stamp(8)
    k.dump(1, WS, 30, 10, 8)
    k("s_endpgm")
    k.label("k1_wb")
    k("s_cmp_ge_u32 s2, 196")
    k("s_cbranch_scc1 k1_touch" if opt("touch", 0) else "s_cbranch_scc1 k1_end")
    srd(k, HS, 72, W_BYTES)
    srd(k, WS, 96, WS_SIZE)
    k(f"""
    s_sub_u32 s31, s30, 4
    s_lshl_b32 s32, s2, 2
    s_add_u32 s32, s32, s31
    s_mul_i32 s33, s32, 9363
    s_lshr_b32 s33, s33, 16
    s_mul_i32 s34, s33, 7
    s_sub_u32 s34, s32, s34
    s_mul_i32 s35, s33, {16 * 896}
    s_lshl_b32 s36, s34, 7
    s_add_u32 s35, s35, s36
    s_add_u32 s36, s35, {8 * 896 - 1024}
    s_lshl_b32 s37, s31, 11
    s_add_u32 s37, s37, {LDS}
    v_lshrrev_b32 v3, 3, v1
    v_and_b32 v4, 7, v1
    v_mul_u32_u24 v3, 896, v3
    v_lshl_add_u32 v3, v4, 4, v3
    s_mov_b32 m0, s37
    s_waitcnt lgkmcnt(0)
    buffer_load_dwordx4 v3, {sr(HS, 4)}, s35 offen lds
    buffer_load_dwordx4 v3, {sr(HS, 4)}, s36 offen offset:1024 lds
    v_lshrrev_b32 v4, 4, v1
    v_bfe_u32 v5, v1, 2, 2
    v_and_b32 v6, 3, v1
    v_lshrrev_b32 v7, 1, v4
    v_and_b32 v4, 1, v4
    v_lshl_add_u32 v7, v7, 3, v5
    v_lshl_add_u32 v7, v7, 7, s37
    v_lshl_add_u32 v7, v4, 5, v7
    v_lshl_add_u32 v7, v6, 3, v7
    v_lshlrev_b32 v2, 4, v1
    s_lshl_b32 s38, s34, 3
    s_and_b32 s39, s33, 7
    s_add_u32 s38, s38, s39
    s_mul_i32 s38, s38, 14
    s_lshr_b32 s39, s33, 3
    s_add_u32 s38, s38, s39
    s_lshl_b32 s38, s38, 11
    s_add_u32 s38, s38, {WS_WB}
    s_barrier
    s_waitcnt vmcnt(0)
    """)
    for e in range(2):
        for hf in range(2):
            k(f"ds_read_b64_tr_b16 {vr(8 + 4 * e + 2 * hf, 2)}, v7 offset:{e * 64 + hf * 512}")
    for e in range(2):
        k(f"s_waitcnt lgkmcnt({2 - 2 * e})")
        k(f"buffer_store_dwordx4 {vr(8 + 4 * e, 4)}, v2, {sr(WS, 4)}, s38 offen offset:{1024 * e} {SCW}")
    k("s_endpgm")
    if opt("touch", 0):
        k.label("k1_touch")
        srd(k, HS, 80, SD_BYTES)
        srd(k, WS, 96, WS_SIZE)
        k(f"""
        s_sub_u32 s31, s2, 196
        s_lshr_b32 s31, s31, 3
        s_lshl_b32 s31, s31, 2
        s_add_u32 s31, s31, s30
        s_sub_u32 s31, s31, 4
        s_lshl_b32 s32, s31, 18
        s_add_u32 s32, s32, {WS_HH}
        s_lshl_b32 s33, s31, 16
        v_lshlrev_b32 v2, 12, v1
        v_lshlrev_b32 v3, 10, v1
        s_waitcnt lgkmcnt(0)
        buffer_load_dword v4, v2, {sr(WS, 4)}, s32 offen
        buffer_load_dword v5, v3, {sr(HS, 4)}, s33 offen
        s_waitcnt vmcnt(0)
        s_endpgm
        """)
    k.label("k1_cs")
    srd(k, WS, 96, WS_SIZE)
    k(f"""
    s_sub_u32 s31, s2, 224
    s_lshl_b32 s31, s31, 2
    s_add_u32 s31, s31, s30
    s_mul_i32 s32, s31, 28672
    s_add_u32 s32, s32, {WS_WA}
    v_lshlrev_b32 v2, 4, v1
    s_mov_b32 s33, 0x3f803f80
    v_mov_b32 v4, 0
    v_mov_b32 v5, 0
    v_mov_b32 v6, 0
    v_mov_b32 v7, 0
    s_waitcnt lgkmcnt(0)
    """)
    for ks in range(28):
        k(f"buffer_load_dwordx4 {vr(16 + 4 * ks, 4)}, v2, {sr(WS, 4)}, s32 offen offset:{(ks & 3) * 1024}")
        if ks & 3 == 3:
            k("s_add_u32 s32, s32, 4096")
    k(f"""
    v_lshlrev_b32 v8, 2, v1
    s_lshl_b32 s31, s31, 8
    s_add_u32 s31, s31, {WS_CS}
    s_mov_b32 vcc_lo, 0
    s_mov_b32 vcc_hi, -1
    """)
    for ks in range(28):
        k(f"s_waitcnt vmcnt({27 - ks})")
        for j in range(4):
            k(f"v_dot2c_f32_bf16 v{4 + j}, s33, v{16 + 4 * ks + j}")
    k(f"""
    v_add_f32 v4, v4, v5
    v_add_f32 v6, v6, v7
    v_add_f32 v4, v4, v6
    v_mov_b32 v5, v4
    v_permlane32_swap_b32 v4, v5
    v_add_f32 v4, v4, v5
    v_sub_f32 v4, 0, v4
    v_cvt_pk_bf16_f32 v5, v4, 0
    v_lshlrev_b32 v6, 16, v5
    v_sub_f32 v6, v4, v6
    v_cvt_pk_bf16_f32 v6, v6, 0
    v_cndmask_b32 v4, v5, v6, vcc
    buffer_store_dword v4, v8, {sr(WS, 4)}, s31 offen
    """)
    k.label("k1_end")
    k("s_endpgm")
    return k, (252, 512, LDS + 8192)


def build(kernels):
    head = ["; generated by dev/gen.py"]
    for kk, (g, b, lds) in kernels:
        head.append(f"; @launch kernel={kk.name} grid=({g},1,1) block=({b},1,1) lds={lds}")
    head.append('.amdgcn_target "amdgcn-amd-amdhsa--gfx950"')
    head.append(".text")
    txt = "\n".join(head) + "\n"
    for kk, _ in kernels:
        txt += kk.text()
    txt += '.section .rodata,"a"\n'
    for kk, _ in kernels:
        txt += kk.descriptor()
    return txt


if __name__ == "__main__":
    import gen_k23
    ks = [gen_k0(), gen_k1(), gen_k23.gen_k23()]
    out = sys.argv[1] if len(sys.argv) > 1 else f"cdna_kernels/{NAME}.s"
    open(out, "w").write(build(ks))
    for kk, _ in ks:
        print(kk.name, "instr", len(kk.ins), "nops", kk.nops, "regs", kk.max_regs())
```
